```python
import torch

def _softmax(x, axis=-1):
    return torch.softmax(x, dim=axis)
def _gelu(x):
    return torch.nn.functional.gelu(x, approximate="tanh")
def _silu(x):
    return torch.nn.functional.silu(x)
def _sigmoid(x):
    return torch.sigmoid(x)
def _layernorm(x, axis=-1, eps=1e-5):
    m = x.mean(dim=axis, keepdim=True)
    v = x.var(dim=axis, keepdim=True, unbiased=False)
    return (x - m) / torch.sqrt(v + eps)
def _scatter_add(tgt, idx, src, axis=0):
    return tgt.clone().index_add_(axis, idx, src)
def _segment_sum(src, seg, n):
    out = torch.zeros((n,) + src.shape[1:], dtype=src.dtype)
    return out.index_add_(0, seg, src)
def _pad(x, pw):
    flat = tuple(v for pair in reversed(pw) for v in pair)
    return torch.nn.functional.pad(x, flat)

kernel_name = 'recurrent_scan__sliding_block_cached__mixer_channel_mlp__decode'

def setup_inputs():

    _w = (lambda a: (lambda t: t.to(torch.bfloat16) if t.is_floating_point() else t)(torch.as_tensor(a)))
    def _A_setup():
        B, Sq, D = 2, 1, 1024
        Hq, Hkv, Sk, Dh = 32, 4, 32768, 128
        assert Hq % Hkv == 0, (Hq, Hkv)
        return {
            "x": _w((lambda *s: torch.randn(*s, dtype=torch.bfloat16) * 0.1)(B, Sq, D)),
            "k_cache": _w((lambda *s: torch.randn(*s, dtype=torch.bfloat16) * 0.8)(B, Hkv, Sk, Dh)),
            "v_cache": _w((lambda *s: torch.randn(*s, dtype=torch.bfloat16) * 3.2)(B, Hkv, Sk, Dh)),
            "wq": _w((lambda *s: torch.randn(*s, dtype=torch.bfloat16) * 0.8)(D, Hq * Dh) * (D ** -0.5)),
            "wo": _w((lambda *s: torch.randn(*s, dtype=torch.bfloat16) * 3.2)(Hq * Dh, D) * ((Hq * Dh) ** -0.5)),
        }
    _A_in = _A_setup()

    def _B_setup():
        B, S, D, F = 2, 1, 1024, 3584
        return {
            "x": _w((lambda *s: torch.randn(*s, dtype=torch.bfloat16) * 0.1)(B, S, D)),
            "w1": _w((lambda *s: torch.randn(*s, dtype=torch.bfloat16) * 3.2)(D, F) * (D ** -0.5)),
            "b1": _w((lambda *s: torch.randn(*s, dtype=torch.bfloat16) * 3.2)(F)),
            "w2": _w((lambda *s: torch.randn(*s, dtype=torch.bfloat16) * 3.2)(F, D) * (F ** -0.5)),
            "b2": _w((lambda *s: torch.randn(*s, dtype=torch.bfloat16) * 3.2)(D)),
        }
    _B_in = _B_setup()

    return {
        "A_x": _A_in["x"],
        "A_k_cache": _A_in["k_cache"],
        "A_v_cache": _A_in["v_cache"],
        "A_wq": _A_in["wq"],
        "A_wo": _A_in["wo"],
        "B_x": _B_in["x"],
        "B_w1": _B_in["w1"],
        "B_b1": _B_in["b1"],
        "B_w2": _B_in["w2"],
        "B_b2": _B_in["b2"],
    }

def reference(A_x, A_k_cache, A_v_cache, A_wq, A_wo, B_x, B_w1, B_b1, B_w2, B_b2):
    def _A_ref(x, k_cache, v_cache, wq, wo):
        B, Sq, D = x.shape
        Hq, Dh = 32, 128
        Hkv, Sk = k_cache.shape[1], k_cache.shape[2]
        W = min(4096, max(256, Sk // 4))
        rep = Hq // Hkv
        q = (lambda x, *d: x.permute(*d))((x @ wq).reshape(B, Sq, Hq, Dh), 0, 2, 1, 3)
        k = (lambda x, n, axis: torch.repeat_interleave(x, n, dim=axis))(k_cache[:, :, Sk - W:, :], rep, axis=1)
        v = (lambda x, n, axis: torch.repeat_interleave(x, n, dim=axis))(v_cache[:, :, Sk - W:, :], rep, axis=1)
        scores = torch.einsum("bhqd,bhkd->bhqk", q, k) * (Dh ** -0.5)
        p = _softmax(scores, axis=-1)
        o = torch.einsum("bhqk,bhkd->bhqd", p, v)
        return (lambda x, *d: x.permute(*d))(o, 0, 2, 1, 3).reshape(B, Sq, Hq * Dh) @ wo

    def _B_ref(x, w1, b1, w2, b2):
        y = _layernorm(x, axis=-1)
        h = _gelu(torch.einsum("bsd,df->bsf", y, w1) + b1)
        return torch.einsum("bsf,fd->bsd", h, w2) + b2

    x = A_x
    xn = _layernorm(x, axis=-1)
    s = _A_ref(xn, A_k_cache, A_v_cache, A_wq, A_wo)
    g = _silu(_B_ref(xn, B_w1, B_b1, B_w2, B_b2))
    return x + s * g
```

```python
import re

TRANS = ("v_exp_f32", "v_log_f32", "v_rcp_f32", "v_rsq_f32", "v_sqrt_f32", "v_sin_f32", "v_cos_f32")

def regs_of(tok):
    tok = tok.strip()
    tok = tok.replace("abs(", "").replace(")", "")
    tok = tok.lstrip("-").strip("|")
    m = re.fullmatch(r"([vsa])(\d+)", tok)
    if m: return {(m.group(1), int(m.group(2)))}
    m = re.fullmatch(r"([vsa])\[(\d+):(\d+)\]", tok)
    if m: return {(m.group(1), i) for i in range(int(m.group(2)), int(m.group(3)) + 1)}
    if tok == "vcc": return {("s", "vcc")}
    if tok == "exec": return {("s", "exec")}
    if tok == "m0": return {("s", "m0")}
    return set()

class Ins:
    def __init__(self, text):
        self.text = text
        t = text.split(";")[0].strip()
        self.label = t.endswith(":")
        self.directive = t.startswith(".") and not self.label
        self.empty = (t == "")
        self.op = ""; self.dst = set(); self.src = set(); self.kind = "none"
        self.states = 0
        if self.label or self.directive or self.empty: return
        parts = t.split(None, 1)
        self.op = op = parts[0]
        rest = parts[1] if len(parts) > 1 else ""
        ops = [o.strip() for o in rest.split(",")] if rest else []
        mods = ""
        if ops:
            clean = []
            for i, o in enumerate(ops):
                if " " in o:
                    a, b = o.split(None, 1)
                    clean.append(a); mods = b + "," + ",".join(ops[i+1:]); break
                clean.append(o)
            ops = clean
        self.mods = mods
        R = [regs_of(o) for o in ops]
        self.states = 1
        U = lambda xs: set().union(*xs) if xs else set()
        if op == "s_nop":
            self.kind = "nop"; self.states = int(ops[0], 0) + 1
        elif op.startswith("v_mfma"):
            self.kind = "mfma"; self.dst = R[0]; self.srcA = R[1] | R[2]; self.srcC = R[3]; self.src = self.srcA | self.srcC
            self.passes = 8 if "32x32" in op else 4
        elif op.startswith("v_"):
            self.kind = "valu"
            self.dst = set(R[0]); self.src = U(R[1:])
            if "permlane" in op and "swap" in op:
                self.dst = R[0] | R[1]; self.src = R[0] | R[1]
            if op.startswith(("v_fmac", "v_dot2c", "v_writelane")) or "dpp" in op or "row_" in mods or "quad_perm" in mods:
                self.src |= R[0]
            if "_co_" in op:
                self.dst |= R[1]; self.src = U(R[2:])
            if op.startswith("v_cndmask") and len(R) == 3: self.src |= {("s", "vcc")}
            self.dpp = "dpp" in op or "row_" in mods or "quad_perm" in mods
            self.trans = op.startswith(TRANS)
            self.sdwa_dst = ("dst_sel" in mods) or ("op_sel:" in mods and not op.startswith("v_pk"))
        elif op.startswith("ds_"):
            self.kind = "ds"
            if op.startswith(("ds_read", "ds_bpermute", "ds_swizzle", "ds_permute")) or "_rtn" in op:
                self.dst = R[0]; self.src = U(R[1:])
            else: self.src = U(R)
        elif op.startswith(("buffer_", "global_")):
            self.kind = "vmem"
            self.lds = " lds" in (" " + mods) or "_lds_" in op
            self.store = "store" in op or "atomic" in op
            self.wide = op.endswith(("x3", "x4"))
            if self.store or self.lds:
                self.src = U(R); self.data = (R[0] if op.startswith("buffer_") else R[1]) if self.store else set()
            else:
                self.dst = R[0]; self.src = U(R[1:])
            if self.lds: self.src |= {("s", "m0")}
        elif op.startswith("s_"):
            self.kind = "salu"
            if op.startswith(("s_cmp", "s_waitcnt", "s_branch", "s_cbranch", "s_barrier", "s_setprio", "s_sleep", "s_endpgm", "s_bitcmp")):
                self.src = U(R)
            else:
                self.dst = set(R[0]) if R else set(); self.src = U(R[1:])
                if "saveexec" in op: self.dst |= {("s", "exec")}
        else:
            raise ValueError("unknown op " + text)

def V(s): return {r for r in s if r[0] in "va"}
def S(s): return {r for r in s if r[0] == "s"}

def need(p, c):
    n = 0
    if p.kind == "valu":
        pv = V(p.dst); ps = S(p.dst)
        if c.kind == "valu":
            if c.dpp and pv & c.src: n = max(n, 2)
            if "permlane" in c.op and pv & c.src: n = max(n, 2)
            if c.op.startswith(("v_readlane", "v_readfirstlane")) and pv & c.src: n = max(n, 1)
            if p.trans and pv & c.src: n = max(n, 1)
            if p.sdwa_dst and pv & (c.src | c.dst): n = max(n, 1)
            if ps & c.src: n = max(n, 4 if c.op.startswith(("v_readlane", "v_writelane")) else 2)
            if ("s", "exec") in ps: n = max(n, 5)
            if p.op.startswith("v_dot") and pv & (c.src | c.dst) and not (c.op == p.op): n = max(n, 3)
        if c.kind == "mfma" and pv & c.src: n = max(n, 2)
        if c.kind == "vmem" and ps & c.src: n = max(n, 5)
        if c.kind == "salu" and ps & c.src: n = max(n, 1)
        if c.kind in ("ds", "vmem") and p.trans and pv & c.src: n = max(n, 1)
    if p.kind == "mfma":
        full = {4: 8, 8: 12}[p.passes]
        if c.kind == "mfma":
            if p.dst & c.srcA: n = max(n, full)
            if p.dst & c.srcC and not (p.dst == c.srcC and p.op == c.op): n = max(n, {4: 6, 8: 10}[p.passes])
            if p.dst & c.dst and not (p.dst & c.srcC): n = max(n, full)
        elif c.kind in ("valu", "ds", "vmem"):
            if p.dst & (c.src | c.dst): n = max(n, full)
            if p.srcC & c.dst: n = max(n, {4: 3, 8: 7}[p.passes])
    if p.kind == "vmem" and getattr(p, "store", False) and p.wide:
        if p.data & c.dst: n = max(n, 2)
    if p.kind == "salu" and ("s", "m0") in p.dst and c.kind == "vmem" and c.lds: n = max(n, 1)
    return n

def pad(lines):
    out = []
    hist = []
    for t in lines:
        c = Ins(t)
        if c.states == 0:
            out.append(t); continue
        dist = 0; req = 0
        for p in reversed(hist[-24:]):
            r = need(p, c) - dist
            if r > req: req = r
            dist += p.states
            if dist > 20: break
        if req > 0:
            nop = Ins("s_nop %d" % (req - 1))
            out.append("    s_nop %d" % (req - 1)); hist.append(nop)
        out.append(t); hist.append(c)
        if c.op in ("s_branch", "s_endpgm"): hist = []
    return out
```

```python
import sys, math, struct
from asmlib import pad
KN = "recurrent_scan__sliding_block_cached__mixer_channel_mlp__decode"

def f32(x): return "0x%08x" % struct.unpack("<I", struct.pack("<f", x))[0]

QP = 0x010000; HP = 0x030000; ML = 0x050000; ZP = 0x060000; OP = 0x100000; SP = 0x200000
PSTR = 8320
WS_USED = 0x400000
FL_L = 0; FL_A = 16; FL_M = 32; TAGW = 48
OA = 64
HL = 512; HSTR = 288
MX = 1280
QL = 2304; QSTR = 272
XN = 4608; XSTR = 2112
YN = XN + 2 * XSTR
PX = 13056
R0 = 17408; KB = R0 + 32768; VB = KB + 32768; W1B = VB + 32768
LDS_BYTES = W1B + 32768

def gen(stamps=False, W0=8, W1=6, nW0=8, trig_q=10, trig_o=30, trig_h=35, codepf=True, ntflag="nt",
        outflag="sc1", sleep=True, header=True, pollsleep=0):
    L = []
    def A(s=""): L.append(("    " + s) if not s.endswith(":") and not s.startswith(".") else s)
    uid = [0]
    def lab(n): uid[0] += 1; return f"L_{n}_{uid[0]}"
    NST = 12
    def stamp(i):
        if stamps: A(f"s_memrealtime s[{64+2*i}:{65+2*i}]")
    def srd(d, size):
        A(f"s_mov_b32 s{d+2}, {size}"); A(f"s_mov_b32 s{d+3}, 0x20000")
    def wait_ge(fl, th, t=120):
        l = lab("w")
        A(f"{l}:")
        A(f"ds_read_b128 v[{t}:{t+3}], v127 offset:{fl}")
        A("s_sub_u32 s58, s58, 1")
        A("s_cbranch_scc1 L_bail")
        A("s_waitcnt lgkmcnt(0)")
        A(f"v_min3_u32 v{t}, v{t}, v{t+1}, v{t+2}")
        A(f"v_min_u32 v{t}, v{t}, v{t+3}")
        A(f"v_cmp_gt_u32 vcc, {th}, v{t}")
        A(f"s_cbranch_vccnz {l}")
    def set_flag(val):
        A(f"v_mov_b32 v125, {val}")
        A("s_mov_b64 exec, 1")
        A("ds_write_b32 v126, v125")
        A("s_mov_b64 exec, -1")
    def get_tag():
        A(f"ds_read_b32 v124, v127 offset:{TAGW}")
        A("s_waitcnt lgkmcnt(0)")
        A("v_readfirstlane_b32 s56, v124")
        A("v_mov_b32 v124, 0xffffff00")
        A("s_and_b32 s52, s56, 0xff")
        A("s_bfe_u32 s53, s56, 0x80008")
        A("s_bfe_u32 s54, s56, 0x80010")
        A("s_lshr_b32 s55, s56, 24")
    def tag4(d, s):
        for k in range(4): A(f"v_and_or_b32 v{d+k}, v{s+k}, v124, s{52+k}")
    def untag(regs, bad):
        for b in regs:
            for k in range(4): A(f"v_xor_b32 v{b+k}, s{52+k}, v{b+k}")
        first = True
        for b in regs:
            if first:
                A(f"v_or3_b32 v{bad}, v{b}, v{b+1}, v{b+2}"); A(f"v_or_b32 v{bad}, v{bad}, v{b+3}"); first = False
            else:
                A(f"v_or3_b32 v{bad}, v{bad}, v{b}, v{b+1}"); A(f"v_or3_b32 v{bad}, v{bad}, v{b+2}, v{b+3}")
        A(f"v_and_b32 v{bad}, 0xff, v{bad}")
    def allred(v, t, op, rors):
        for sw in ("32", "16"):
            A(f"v_mov_b32 v{t}, v{v}")
            A(f"v_permlane{sw}_swap_b32 v{v}, v{t}")
            A(f"{op} v{v}, v{v}, v{t}")
        for r in rors:
            A(f"{op}_dpp v{v}, v{v}, v{v} row_ror:{r} row_mask:0xf bank_mask:0xf")
    def tred4(a, rors):
        A(f"v_permlane32_swap_b32 v{a}, v{a+2}")
        A(f"v_permlane32_swap_b32 v{a+1}, v{a+3}")
        A(f"v_add_f32 v{a}, v{a}, v{a+2}")
        A(f"v_add_f32 v{a+1}, v{a+1}, v{a+3}")
        A(f"v_permlane16_swap_b32 v{a}, v{a+1}")
        A(f"v_add_f32 v{a}, v{a}, v{a+1}")
        for r in rors:
            A(f"v_add_f32_dpp v{a}, v{a}, v{a} row_ror:{r} row_mask:0xf bank_mask:0xf")
    def rne(d, s):
        A(f"v_cvt_pk_bf16_f32 v{d}, v{s}, v{s}"); A(f"v_and_b32 v{d}, 0xffff0000, v{d}")
    def poll_tail(l, bad):
        A(f"v_cmp_ne_u32 vcc, 0, v{bad}")
        A(f"s_cbranch_vccnz {l}")
    def poll_head(l):
        A(f"{l}:")
        A("s_sub_u32 s58, s58, 64")
        A("s_cbranch_scc1 L_bail")
    def gemv64(xb, rb, rs_sreg, need_m, need_l, st0):
        A("v_lshrrev_b32 v1, 2, v0")
        A("v_bfe_u32 v2, v0, 3, 2")
        A("v_xor_b32 v2, s5, v2")
        A("v_lshlrev_b32 v2, 5, v2")
        A("v_lshl_add_u32 v2, v1, 7, v2")
        A("v_and_b32 v3, 3, v0")
        A("v_lshl_add_u32 v2, v3, 3, v2")
        A(f"v_add_u32 v2, {rb}, v2")
        A("v_and_b32 v3, 1, v0")
        A(f"v_mul_u32_u24 v3, {XSTR}, v3")
        A("v_lshrrev_b32 v4, 4, v0")
        A("v_lshl_add_u32 v3, v4, 3, v3")
        A(f"s_lshl_b32 s6, s{rs_sreg}, 9")
        A(f"s_add_u32 s6, s6, {xb}")
        A("v_add_u32 v3, s6, v3")
        wait_ge(FL_M, need_m)
        stamp(st0)
        for kb in range(8):
            A(f"ds_read2_b64 v[{16+4*kb}:{19+4*kb}], v3 offset0:{kb*8} offset1:{kb*8+4}")
        get_tag()
        wait_ge(FL_L, need_l)
        stamp(st0 + 1)
        for kb in range(8):
            A(f"ds_read_b64_tr_b16 v[{48+4*kb}:{49+4*kb}], v2 offset:{kb*4096}")
            A(f"ds_read_b64_tr_b16 v[{50+4*kb}:{51+4*kb}], v2 offset:{kb*4096+2048}")
        for kb in range(8):
            A(f"s_waitcnt lgkmcnt({14-2*kb})")
            c = "0" if kb == 0 else "v[8:11]"
            A(f"v_mfma_f32_16x16x32_bf16 v[8:11], v[{48+4*kb}:{51+4*kb}], v[{16+4*kb}:{19+4*kb}], {c}")

    if header:
        L.append(open("cdna_kernels/%s.s.ref" % KN).read().split("; Override launch")[0].rstrip())
    L.append(f"; @launch grid=(256,1,1) block=(768,1,1) lds={LDS_BYTES}")
    A('.amdgcn_target "amdgcn-amd-amdhsa--gfx950"')
    A(".text")
    A(f".globl {KN}_kernel")
    A(".p2align 8")
    A(f".type {KN}_kernel,@function")
    A(f"{KN}_kernel:")
    stamp(0)
    A("s_load_dwordx2 s[8:9], s[0:1], 24")
    A("s_load_dwordx2 s[36:37], s[0:1], 0")
    A("s_load_dwordx2 s[12:13], s[0:1], 96")
    A("v_lshrrev_b32 v1, 6, v0")
    A("s_cmp_ge_u32 s2, 256")
    A("s_cbranch_scc1 L_end")
    A("v_readfirstlane_b32 s3, v1")
    A("v_and_b32 v0, 63, v0")
    A("s_and_b32 s4, s2, 7")
    A("s_lshl_b32 s4, s4, 5")
    A("s_lshr_b32 s6, s2, 3")
    A("s_or_b32 s4, s4, s6")
    A("s_and_b32 s5, s3, 3")
    A("s_cmp_ge_u32 s3, 4")
    A("s_cbranch_scc1 L_notL")
    A("v_lshrrev_b32 v1, 3, v0")
    A("v_and_b32 v2, 6, v1")
    A("v_xor_b32 v2, v0, v2")
    A("v_and_b32 v2, 7, v2")
    A("v_lshlrev_b32 v2, 4, v2")
    A("v_lshl_add_u32 v3, v1, 13, v2")
    A("s_bfe_u32 s6, s4, 0x20004")
    A("s_lshl2_add_u32 s6, s6, s5")
    A("s_lshl_b32 s6, s6, 19")
    A("s_lshr_b32 s7, s4, 6")
    A("s_and_b32 s57, s4, 15")
    A("s_lshl4_add_u32 s7, s7, s57")
    A("s_lshl_b32 s7, s7, 7")
    A("s_add_u32 s6, s6, s7")
    A("s_lshl_b32 s59, s5, 13")
    A(f"s_add_u32 m0, s59, {R0}")
    srd(8, 8388608)
    A("s_waitcnt lgkmcnt(0)")
    cnt = [0]
    ticks = sorted(set([8, 16, 24, 32, 39, trig_q, trig_o, trig_h]))
    ticked = set()
    def Wn(n): return W0 if n < nW0 + W0 else W1
    def pre_issue():
        n = cnt[0]; w = Wn(n)
        if n >= w:
            A(f"s_waitcnt vmcnt({w-1})")
            landed = n - w + 1
            todo = [t for t in ticks if t <= landed and t not in ticked]
            if todo:
                set_flag(max(todo)); ticked.update(todo)
        cnt[0] += 1
    def late_setup():
        A("s_load_dwordx2 s[16:17], s[0:1], 8")
        A("s_load_dwordx2 s[20:21], s[0:1], 16")
        A("s_load_dwordx2 s[24:25], s[0:1], 48")
        A("s_load_dwordx2 s[28:29], s[0:1], 64")
        A("s_load_dwordx2 s[32:33], s[0:1], 32")
        srd(16, 67108864); srd(20, 67108864); srd(28, 7340032); srd(32, 8388608); srd(12, WS_USED if not stamps else 0x10000000)
        A("s_mov_b32 s27, 0x20000")
        A("s_and_b32 s7, s4, 31")
        A("s_cmp_lt_u32 s7, 28")
        A("s_cselect_b32 s26, 7340032, 0")
        A("s_mov_b32 s58, 0x100000")
        A("v_mov_b32 v127, 0")
        A("s_lshl_b32 s57, s5, 2")
        A(f"v_mov_b32 v126, s57")
        A("v_mul_u32_u24 v4, 7168, v1")
        A("v_add_u32 v4, v4, v2")
        A("v_lshrrev_b32 v1, 4, v0")
        A("v_lshlrev_b32 v2, 1, v1")
        A("v_xor_b32 v2, v0, v2")
        A("v_and_b32 v2, 15, v2")
        A("v_lshlrev_b32 v2, 4, v2")
        A("v_lshl_add_u32 v5, v1, 8, v2")
        A("v_xor_b32 v6, 0x80, v5")
        A("v_lshl_add_u32 v7, v1, 11, v2")
        A("s_and_b32 s57, s5, 1")
        A("s_lshl_b32 s57, s57, 7")
        A("v_xor_b32 v7, s57, v7")
        A("v_xor_b32 v8, 0x80, v7")
        A("v_and_b32 v2, 15, v0")
        A("v_lshlrev_b32 v9, 4, v2")
        A("v_lshl_add_u32 v9, v1, 14, v9")
        A("v_and_b32 v10, 1, v1")
        A("v_lshl_add_u32 v10, v2, 1, v10")
        A("v_lshlrev_b32 v10, 5, v10")
        A("v_lshrrev_b32 v11, 5, v0")
        A("v_lshl_add_u32 v10, v11, 4, v10")
        A("v_bfe_u32 v11, v0, 3, 1")
        A("v_lshlrev_b32 v11, 7, v11")
        A("v_lshl_add_u32 v11, v1, 5, v11")
        A("v_and_b32 v2, 1, v0")
        A("v_lshlrev_b32 v2, 4, v2")
        A("v_mov_b32 v1, 0xffff")
        A("v_lshlrev_b32 v1, v2, v1")
        A("v_bfe_u32 v2, v0, 1, 2")
        for r in range(4):
            A(f"v_cmp_eq_u32 vcc, {r}, v2")
            A(f"v_cndmask_b32 v{12+r}, 0, v1, vcc")
        A("s_bfe_u32 s60, s4, 0x10005")
        A("s_lshr_b32 s61, s4, 6")
        A("s_lshl2_add_u32 s6, s60, s61")
        A("s_lshl_b32 s6, s6, 8")
        A("s_add_u32 s6, s6, s7")
        A("s_add_u32 s6, s6, 224")
        A("s_lshl_b32 s6, s6, 15")
        A("s_add_u32 s62, s6, s59")
        A("s_mul_i32 s60, s60, 28")
        A("s_add_u32 s60, s60, s7")
        A("s_lshl_b32 s60, s60, 7")
        A("s_lshl2_add_u32 s61, s61, s5")
        A(f"s_mul_i32 s61, s61, {64*7168}")
        A("s_add_u32 s63, s60, s61")
        A("s_waitcnt lgkmcnt(0)")
        A("s_barrier")
    for i in range(8):
        if i == min(W0, 8): late_setup()
        pre_issue()
        if i == 4: A("s_add_u32 m0, m0, 4096")
        A(f"buffer_load_dwordx4 v3, s[8:11], s6 offen offset:{(i&3)*1024} {ntflag} lds") if i < min(W0, 8) else \
        A(f"buffer_load_dwordx4 v3, s[8:11], s96 offen offset:{(i&3)*1024} {ntflag} lds")
        if i < 7:
            inc = 65536 - 1024 if (i & 3) != 3 else 65536 + 3072
            if i + 1 < min(W0, 8): A(f"s_add_u32 s6, s6, {inc}")
            elif i + 1 == min(W0, 8): A(f"s_add_u32 s96, s6, {inc}")
            else: A(f"s_add_u32 s96, s96, {inc}")
    stamp(1)
    A("s_branch L_Lmain")
    A("L_notL:")
    srd(36, 4096)
    A("v_lshlrev_b32 v1, 4, v0")
    A("v_mov_b32 v127, 0")
    A("s_lshl_b32 s6, s5, 11")
    A("s_setprio 2")
    A("s_and_b32 s7, s3, 14")
    A("s_cmp_eq_u32 s7, 8")
    A("s_cbranch_scc0 L_nox")
    A("s_waitcnt lgkmcnt(0)")
    A("buffer_load_dwordx4 v[4:7], v1, s[36:39], s6 offen")
    A("buffer_load_dwordx4 v[8:11], v1, s[36:39], s6 offen offset:1024")
    A("s_load_dword s57, s[12:13], 0")
    A("L_nox:")
    A("v_lshlrev_b32 v2, 2, v0")
    A("s_cmp_eq_u32 s3, 4")
    A("s_cbranch_scc0 L_noz")
    A("s_mov_b64 exec, 0xfff")
    A("ds_write_b32 v2, v127")
    A("s_mov_b64 exec, -1")
    A("s_waitcnt lgkmcnt(0)")
    A("L_noz:")
    A("s_barrier")
    srd(12, WS_USED if not stamps else 0x10000000)
    A("s_mov_b32 s58, 0x100000")
    A("s_lshl_b32 s6, s3, 2")
    A("v_mov_b32 v126, s6")
    A("s_cmp_lt_u32 s3, 8")
    A("s_cbranch_scc1 L_A")
    A("s_cmp_lt_u32 s5, 2")
    A("s_cbranch_scc1 L_ln")
    set_flag(2)
    A("s_waitcnt lgkmcnt(0)")
    A("s_branch L_Mmain")
    A("L_ln:")
    A(f"s_mul_i32 s6, s5, {XSTR}")
    A(f"s_add_u32 s6, s6, {XN}")
    A("v_add_u32 v1, s6, v1")
    A("s_mov_b32 s60, 1")
    A("s_waitcnt lgkmcnt(0)")
    A("s_mul_i32 s57, s57, 1664525")
    A("s_add_u32 s57, s57, 1013904223")
    A("v_mov_b32 v2, s57")
    A(f"ds_write_b32 v127, v2 offset:{TAGW}")
    A("s_waitcnt vmcnt(0)")
    stamp(1)
    A("L_lnloop:")
    for k in range(8):
        A(f"v_lshlrev_b32 v{16+2*k}, 16, v{4+k}")
        A(f"v_and_b32 v{17+2*k}, 0xffff0000, v{4+k}")
    for k in range(4): A(f"v_pk_add_f32 v[{32+2*k}:{33+2*k}], v[{16+4*k}:{17+4*k}], v[{18+4*k}:{19+4*k}]")
    A("v_pk_add_f32 v[32:33], v[32:33], v[34:35]")
    A("v_pk_add_f32 v[36:37], v[36:37], v[38:39]")
    A("v_pk_add_f32 v[32:33], v[32:33], v[36:37]")
    A("v_add_f32 v12, v32, v33")
    allred(12, 13, "v_add_f32", (8, 4, 2, 1))
    A(f"v_mul_f32 v12, {f32(1/1024)}, v12")
    for k in range(8): A(f"v_pk_add_f32 v[{32+2*k}:{33+2*k}], v[{16+2*k}:{17+2*k}], v[12:13] op_sel_hi:[1,0] neg_lo:[0,1] neg_hi:[0,1]")
    A("v_pk_mul_f32 v[14:15], v[32:33], v[32:33]")
    A("v_pk_mul_f32 v[48:49], v[34:35], v[34:35]")
    for k in range(2, 8, 2):
        A(f"v_pk_fma_f32 v[14:15], v[{32+2*k}:{33+2*k}], v[{32+2*k}:{33+2*k}], v[14:15]")
        A(f"v_pk_fma_f32 v[48:49], v[{34+2*k}:{35+2*k}], v[{34+2*k}:{35+2*k}], v[48:49]")
    A("v_pk_add_f32 v[14:15], v[14:15], v[48:49]")
    A("v_add_f32 v14, v14, v15")
    rne(12, 12)
    for k in range(8): A(f"v_pk_add_f32 v[{32+2*k}:{33+2*k}], v[{16+2*k}:{17+2*k}], v[12:13] op_sel_hi:[1,0] neg_lo:[0,1] neg_hi:[0,1]")
    allred(14, 15, "v_add_f32", (8, 4, 2, 1))
    A(f"v_mul_f32 v14, {f32(1/1024)}, v14")
    rne(14, 14)
    A(f"v_add_f32 v14, {f32(1e-5)}, v14")
    rne(14, 14)
    A("v_sqrt_f32 v14, v14")
    for k in range(8): A(f"v_cvt_pk_bf16_f32 v{4+k}, v{32+2*k}, v{33+2*k}")
    rne(14, 14)
    A("v_rcp_f32 v14, v14")
    for k in range(8):
        A(f"v_lshlrev_b32 v{16+2*k}, 16, v{4+k}")
        A(f"v_and_b32 v{17+2*k}, 0xffff0000, v{4+k}")
    for k in range(8): A(f"v_pk_mul_f32 v[{16+2*k}:{17+2*k}], v[{16+2*k}:{17+2*k}], v[14:15] op_sel_hi:[1,0]")
    for k in range(8): A(f"v_cvt_pk_bf16_f32 v{4+k}, v{16+2*k}, v{17+2*k}")
    A("ds_write_b128 v1, v[4:7]")
    A("ds_write_b128 v1, v[8:11] offset:1024")
    set_flag("s60")
    A(f"v_add_u32 v1, {YN-XN}, v1")
    A("s_add_u32 s60, s60, 1")
    A("s_cmp_eq_u32 s60, 2")
    A("s_cbranch_scc1 L_lnloop")
    stamp(2)
    A("L_Mmain:")
    A("s_load_dwordx2 s[40:41], s[0:1], 56")
    srd(40, 7168)
    A("s_lshr_b32 s61, s4, 6")
    A("s_lshr_b32 s62, s4, 3")
    A("v_and_b32 v90, 31, v0")
    A("v_min_u32 v90, 27, v90")
    A("s_mul_i32 s6, s62, 28")
    A("v_add_u32 v91, s6, v90")
    A("v_lshrrev_b32 v92, 5, v0")
    A("v_mul_u32_u24 v93, 14336, v92")
    A("v_lshl_add_u32 v93, v91, 4, v93")
    A("v_lshlrev_b32 v91, 3, v91")
    A(f"v_mul_u32_u24 v92, {HSTR}, v92")
    A("v_lshl_add_u32 v92, v90, 3, v92")
    A("s_waitcnt lgkmcnt(0)")
    A("s_cmp_eq_u32 s5, 0")
    A("s_cbranch_scc0 L_nob1")
    A("buffer_load_dwordx2 v[94:95], v91, s[40:43], 0 offen")
    A("L_nob1:")
    gemv64(YN, W1B, 61, 2, 32, 3)
    A("s_and_b32 s7, s4, 31")
    A("s_cmp_ge_u32 s7, 28")
    A("s_cbranch_scc1 L_nohp")
    A("s_bfe_u32 s6, s4, 0x10005")
    A("s_mul_i32 s6, s6, 28")
    A("s_add_u32 s6, s6, s7")
    A("s_lshl2_add_u32 s6, s6, s5")
    A("s_lshl_b32 s6, s6, 6")
    A(f"s_mul_i32 s7, s61, {2*14336}")
    A("s_add_u32 s6, s6, s7")
    A(f"s_add_u32 s6, s6, {HP}")
    A("v_and_b32 v1, 1, v0")
    A("v_mul_u32_u24 v1, 14336, v1")
    A("v_and_b32 v2, 48, v0")
    A("v_add_u32 v1, v1, v2")
    tag4(12, 8)
    A("s_mov_b32 exec_lo, 0x30003")
    A("s_mov_b32 exec_hi, 0x30003")
    A("buffer_store_dwordx4 v[12:15], v1, s[12:15], s6 offen sc1")
    A("s_mov_b64 exec, -1")
    A("L_nohp:")
    stamp(5)
    A("v_lshrrev_b32 v1, 2, v0")
    A("v_and_b32 v2, 7, v1")
    A("s_lshl_b32 s6, s5, 1")
    A("v_xor_b32 v2, s6, v2")
    A("v_lshlrev_b32 v2, 5, v2")
    A("v_lshl_add_u32 v2, v1, 8, v2")
    A("v_and_b32 v3, 3, v0")
    A("v_lshl_add_u32 v2, v3, 3, v2")
    A(f"v_add_u32 v2, {R0}, v2")
    A("v_xor_b32 v3, 32, v2")
    A("v_and_b32 v4, 1, v0")
    A(f"v_mul_u32_u24 v5, {HSTR}, v4")
    A("v_lshrrev_b32 v6, 4, v0")
    A("v_lshl_add_u32 v5, v6, 3, v5")
    A(f"v_add_u32 v5, {HL}, v5")
    A("v_bfe_u32 v7, v0, 1, 1")
    A("v_lshl_add_u32 v6, v7, 2, v6")
    A("v_lshlrev_b32 v6, 5, v6")
    A("v_lshl_add_u32 v6, v4, 4, v6")
    A("v_cmp_eq_u32 s[98:99], 1, v7")
    A(f"s_mul_i32 s6, s62, {PSTR}")
    A("s_and_b32 s7, s4, 7")
    A("s_lshl2_add_u32 s7, s7, s5")
    A("s_lshl_b32 s7, s7, 8")
    A("s_add_u32 s6, s6, s7")
    A(f"s_add_u32 s63, s6, {ZP}")
    A("s_cmp_eq_u32 s5, 0")
    A("s_cbranch_scc1 L_hgather")
    set_flag(3)
    A("s_branch L_hdone")
    A("L_hgather:")
    wait_ge(FL_L, trig_h)
    stamp(6)
    l = lab("hp"); poll_head(l)
    for rs in range(4):
        A(f"s_mov_b32 s6, {HP + rs*2*14336}")
        A(f"buffer_load_dwordx4 v[{96+4*rs}:{99+4*rs}], v93, s[12:15], s6 offen sc1")
    A("s_waitcnt vmcnt(0)")
    untag([96, 100, 104, 108], 112)
    poll_tail(l, 112)
    stamp(7)
    A("v_pk_add_f32 v[96:97], v[96:97], v[100:101]")
    A("v_pk_add_f32 v[98:99], v[98:99], v[102:103]")
    A("v_pk_add_f32 v[104:105], v[104:105], v[108:109]")
    A("v_pk_add_f32 v[106:107], v[106:107], v[110:111]")
    A("v_pk_add_f32 v[96:97], v[96:97], v[104:105]")
    A("v_pk_add_f32 v[98:99], v[98:99], v[106:107]")
    A("v_cvt_pk_bf16_f32 v100, v96, v97")
    A("v_cvt_pk_bf16_f32 v101, v98, v99")
    for k in range(2):
        A(f"v_lshlrev_b32 v{96+2*k}, 16, v{100+k}"); A(f"v_and_b32 v{97+2*k}, 0xffff0000, v{100+k}")
        A(f"v_lshlrev_b32 v{104+2*k}, 16, v{94+k}"); A(f"v_and_b32 v{105+2*k}, 0xffff0000, v{94+k}")
    A("v_pk_add_f32 v[96:97], v[96:97], v[104:105]")
    A("v_pk_add_f32 v[98:99], v[98:99], v[106:107]")
    A("v_cvt_pk_bf16_f32 v100, v96, v97")
    A("v_cvt_pk_bf16_f32 v101, v98, v99")
    for k in range(2):
        A(f"v_lshlrev_b32 v{96+2*k}, 16, v{100+k}"); A(f"v_and_b32 v{97+2*k}, 0xffff0000, v{100+k}")
    kk = -2.0 * math.sqrt(2.0 / math.pi) * math.log2(math.e)
    A(f"s_mov_b32 s6, {f32(kk*0.044715)}")
    A(f"v_mov_b32 v108, {f32(kk)}")
    for k in range(4): A(f"v_mul_f32 v{100+k}, v{96+k}, v{96+k}")
    for k in range(4): A(f"v_fma_f32 v{100+k}, v{100+k}, s6, v108")
    for k in range(4): A(f"v_mul_f32 v{100+k}, v{100+k}, v{96+k}")
    for k in range(4): A(f"v_exp_f32 v{100+k}, v{100+k}")
    for k in range(4): A(f"v_add_f32 v{100+k}, 1.0, v{100+k}")
    for k in range(4): A(f"v_rcp_f32 v{100+k}, v{100+k}")
    for k in range(4): A(f"v_mul_f32 v{96+k}, v{96+k}, v{100+k}")
    A("v_cvt_pk_bf16_f32 v100, v96, v97")
    A("v_cvt_pk_bf16_f32 v101, v98, v99")
    A(f"ds_write_b64 v92, v[100:101] offset:{HL}")
    set_flag(3)
    A("L_hdone:")
    wait_ge(FL_L, 39)
    stamp(8)
    for kk_ in range(7):
        A(f"ds_read_b64_tr_b16 v[{16+2*kk_}:{17+2*kk_}], v2 offset:{kk_*4096}")
        A(f"ds_read_b64_tr_b16 v[{32+2*kk_}:{33+2*kk_}], v3 offset:{kk_*4096}")
    wait_ge(FL_M, 3)
    stamp(9)
    for kb in range(3): A(f"ds_read2_b64 v[{48+4*kb}:{51+4*kb}], v5 offset0:{kb*8} offset1:{kb*8+4}")
    A("ds_read_b64 v[60:61], v5 offset:192")
    A("s_waitcnt lgkmcnt(0)")
    A("v_mfma_f32_16x16x16_bf16 v[8:11], v[28:29], v[60:61], 0")
    A("v_mfma_f32_16x16x16_bf16 v[12:15], v[44:45], v[60:61], 0")
    for kb in range(3):
        A(f"v_mfma_f32_16x16x32_bf16 v[8:11], v[{16+4*kb}:{19+4*kb}], v[{48+4*kb}:{51+4*kb}], v[8:11]")
        A(f"v_mfma_f32_16x16x32_bf16 v[12:15], v[{32+4*kb}:{35+4*kb}], v[{48+4*kb}:{51+4*kb}], v[12:15]")
    for k in range(4): A(f"v_cndmask_b32 v{8+k}, v{8+k}, v{12+k}, s[98:99]")
    tag4(8, 8)
    A("s_mov_b32 exec_lo, 0xf000f")
    A("s_mov_b32 exec_hi, 0xf000f")
    A("buffer_store_dwordx4 v[8:11], v6, s[12:15], s63 offen sc1")
    A("s_mov_b64 exec, -1")
    set_flag(4)
    stamp(10)
    A("s_branch L_fin")

    A("L_Lmain:")
    if W0 >= 8: late_setup()
    for name, rb, sr in (("k", KB, 16), ("v", VB, 20)):
        for i in range(8):
            pre_issue()
            if i == 0: A(f"s_add_u32 m0, s59, {rb}"); so = "s62"
            if i == 4: A("s_add_u32 m0, m0, 4096"); A("s_add_u32 s6, s62, 4096"); so = "s6"
            A(f"buffer_load_dwordx4 v{5+(i&1)}, s[{sr}:{sr+3}], {so} offen offset:{(i&3)*1024} {ntflag} lds")
        stamp(2 if name == "k" else 3)
    for i in range(8):
        pre_issue()
        if i == 0: A(f"s_add_u32 m0, s59, {W1B}")
        if i == 4: A("s_add_u32 m0, m0, 4096")
        A(f"buffer_load_dwordx4 v4, s[24:27], s63 offen offset:{(i&3)*1024} {ntflag} lds")
        if i < 7: A(f"s_add_u32 s63, s63, {8*7168 - 1024 if (i & 3) != 3 else 8*7168 + 3072}")
    stamp(4)
    wait_ge(FL_A, 1)
    A("s_lshr_b32 s6, s4, 3")
    A("s_lshl2_add_u32 s6, s6, s5")
    A(f"s_mul_i32 s6, s6, {28*2048}")
    A("s_and_b32 s7, s4, 7")
    A("s_lshl_b32 s7, s7, 8")
    A("s_add_u32 s6, s6, s7")
    A("s_mul_i32 s7, s5, 7168")
    for i in range(7):
        pre_issue()
        if i == 0: A(f"s_add_u32 m0, s7, {R0}")
        if i == 4: A("s_add_u32 m0, m0, 4096")
        A(f"buffer_load_dwordx4 v{7+(i&1)}, s[28:31], s6 offen offset:{(i&3)*1024} {ntflag} lds")
        if i < 6: A(f"s_add_u32 s6, s6, {8192 - 1024 if (i & 3) != 3 else 8192 + 3072}")
    stamp(5)
    A("s_lshr_b32 s60, s4, 1")
    A("s_and_b32 s7, s4, 1")
    A("s_lshl2_add_u32 s61, s7, s5")
    A("s_lshl_b32 s6, s60, 8")
    A("s_add_u32 s6, s6, s61")
    A("s_lshl_b32 s6, s6, 8")
    for t in range(8):
        pre_issue()
        A(f"buffer_load_dwordx4 v[{16+4*t}:{19+4*t}], v9, s[32:35], s6 offen offset:{(t&1)*2048} {ntflag}")
        if t & 1 and t < 7: A("s_add_u32 s6, s6, 4096")
    for t in [t for t in ticks if t not in ticked]:
        A(f"s_waitcnt vmcnt({47-t})"); set_flag(t)
    stamp(6)
    A(f"s_mul_i32 s6, s60, {PSTR}")
    A("s_lshl_b32 s61, s61, 10")
    A("s_add_u32 s6, s6, s61")
    A(f"s_add_u32 s6, s6, {SP}")
    get_tag()
    wait_ge(FL_A, 4)
    stamp(7)
    A(f"ds_read_b128 v[48:51], v11 offset:{OA}")
    A(f"ds_read_b128 v[52:55], v11 offset:{OA+16}")
    A("s_waitcnt lgkmcnt(0)")
    for t in range(8):
        for r in range(4): A(f"v_and_b32 v{56+4*t+r}, v{48+t}, v{12+r}")
    for t in range(8):
        A(f"s_waitcnt vmcnt({7-t})")
        c = "0" if t == 0 else "v[4:7]"
        A(f"v_mfma_f32_16x16x32_bf16 v[4:7], v[{56+4*t}:{59+4*t}], v[{16+4*t}:{19+4*t}], {c}")
    stamp(8)
    tag4(4, 4)
    A("buffer_store_dwordx4 v[4:7], v10, s[12:15], s6 offen sc1")
    set_flag(64)
    stamp(9)
    A("s_branch L_fin")

    A("L_A:")
    A("s_load_dwordx2 s[44:45], s[0:1], 72")
    A("s_load_dwordx2 s[48:49], s[0:1], 80")
    srd(44, 2048); srd(48, 4096)
    A("s_lshr_b32 s61, s4, 6")
    A("s_bfe_u32 s60, s4, 0x10005")
    A("s_bfe_u32 s62, s4, 0x20004")
    A("v_lshrrev_b32 v1, 4, v0")
    A("s_lshl_b32 s6, s4, 2")
    A("v_add_lshl_u32 v116, v1, s6, 1")
    A("v_and_b32 v2, 1, v0")
    A("v_lshl_add_u32 v117, v2, 11, v116")
    A("s_waitcnt lgkmcnt(0)")
    A("s_cmp_eq_u32 s5, 3")
    A("s_cbranch_scc0 L_nofin0")
    A("buffer_load_ushort v118, v117, s[36:39], 0 offen")
    A("buffer_load_ushort v119, v116, s[44:47], 0 offen")
    A("buffer_load_ushort v115, v117, s[48:51], 0 offen")
    A("v_mul_u32_u24 v2, 0x3f0000, v2")
    A("buffer_load_dword v114, v2, s[12:15], 0 offen offset:128")
    A("L_nofin0:")
    if codepf:
        A("s_and_b32 s6, s4, 31")
        A("s_lshl2_add_u32 s6, s6, s5")
        A(f"s_cmp_eq_u32 s6, {28*4+2}")
        A("s_cbranch_scc0 L_nopf")
        A("s_getpc_b64 s[6:7]")
        A("L_pc:")
        A(f"s_sub_u32 s6, s6, L_pc-{KN}_kernel")
        A("s_subb_u32 s7, s7, 0")
        A(f"v_add_u32 v1, ((L_end-{KN}_kernel)>>7)-63, v0")
        A("v_max_i32 v1, 0, v1")
        A("v_lshlrev_b32 v1, 7, v1")
        A("v_mov_b32 v3, s7")
        A("v_add_co_u32 v2, vcc, s6, v1")
        A("v_addc_co_u32 v3, vcc, 0, v3, vcc")
        A("global_load_dword v113, v[2:3], off")
        A("L_nopf:")
    gemv64(XN, R0, 62, 1, 8, 1)
    set_flag(1)
    A("s_lshl3_add_u32 s6, s61, s62")
    A("s_lshl_b32 s6, s6, 12")
    A("s_and_b32 s7, s4, 15")
    A("s_lshl2_add_u32 s7, s7, s5")
    A("s_lshl_b32 s7, s7, 6")
    A("s_add_u32 s6, s6, s7")
    A(f"s_add_u32 s6, s6, {QP}")
    A("v_and_b32 v1, 1, v0")
    A("v_lshlrev_b32 v1, 14, v1")
    A("v_and_b32 v2, 48, v0")
    A("v_add_u32 v1, v1, v2")
    tag4(12, 8)
    A("s_mov_b32 exec_lo, 0x30003")
    A("s_mov_b32 exec_hi, 0x30003")
    A("buffer_store_dwordx4 v[12:15], v1, s[12:15], s6 offen sc1")
    A("s_mov_b64 exec, -1")
    stamp(3)
    A("v_lshlrev_b32 v1, 4, v0")
    A("s_lshl1_add_u32 s6, s61, s60")
    A("s_lshl4_add_u32 s6, s6, s5")
    A("s_lshl_b32 s6, s6, 10")
    A(f"s_add_u32 s6, s6, {QP}")
    A("v_add_u32 v2, s6, v1")
    A("v_lshrrev_b32 v3, 5, v0")
    A("s_lshl_b32 s6, s5, 1")
    A("v_add_u32 v3, s6, v3")
    A(f"v_mul_u32_u24 v3, {QSTR}, v3")
    A("v_and_b32 v4, 31, v0")
    A("v_lshl_add_u32 v3, v4, 3, v3")
    A("v_and_b32 v4, 7, v0")
    A("v_lshrrev_b32 v5, 4, v0")
    A(f"v_mul_u32_u24 v6, {QSTR}, v4")
    A("v_lshl_add_u32 v6, v5, 4, v6")
    A("v_lshlrev_b32 v7, 1, v4")
    A("v_xor_b32 v7, v7, v5")
    A("v_lshlrev_b32 v7, 4, v7")
    A("v_and_b32 v8, 15, v0")
    A("v_lshl_add_u32 v7, v8, 8, v7")
    A("s_lshl_b32 s6, s5, 13")
    A(f"s_add_u32 s6, s6, {KB}")
    A("v_add_u32 v8, s6, v7")
    A("v_xor_b32 v9, 64, v8")
    A("v_xor_b32 v10, 0x80, v8")
    A("v_xor_b32 v11, 0xc0, v8")
    A("v_lshlrev_b32 v12, 15, v4")
    A("v_and_b32 v13, 8, v0")
    A("v_lshl_add_u32 v12, v13, 3, v12")
    A("v_lshl_add_u32 v12, v5, 4, v12")
    A("v_cmp_eq_u32 s[98:99], 8, v13")
    A("v_lshlrev_b32 v13, 10, v4")
    A("v_lshrrev_b32 v14, 2, v0")
    A("v_and_b32 v15, 7, v14")
    A("s_lshl_b32 s6, s5, 1")
    A("v_xor_b32 v15, s6, v15")
    A("v_lshlrev_b32 v15, 5, v15")
    A("v_lshl_add_u32 v14, v14, 8, v15")
    A("v_and_b32 v15, 3, v0")
    A("v_lshl_add_u32 v14, v15, 3, v14")
    A(f"v_add_u32 v14, {VB}, v14")
    A("v_xor_b32 v15, 32, v14")
    A("s_mov_b32 s96, 4096"); A("s_mov_b32 s97, 8192"); A("s_mov_b32 s57, 12288")
    def qloads():
        for rs, so in enumerate(("0", "s96", "s97", "s57")):
            A(f"buffer_load_dwordx4 v[{16+4*rs}:{19+4*rs}], v2, s[12:15], {so} offen sc1")
    wait_ge(FL_L, trig_q)
    stamp(4)
    qloads()
    wait_ge(FL_L, 16)
    for T in range(2):
        for t in range(4): A(f"ds_read_b128 v[{48+16*T+4*t}:{51+16*T+4*t}], v{8+t} offset:{T*4096}")
    A("s_branch L_qchk")
    l = lab("qp"); poll_head(l)
    qloads()
    A("L_qchk:")
    A("s_waitcnt vmcnt(0)")
    untag([16, 20, 24, 28], 32)
    poll_tail(l, 32)
    stamp(5)
    A("v_pk_add_f32 v[16:17], v[16:17], v[20:21]")
    A("v_pk_add_f32 v[18:19], v[18:19], v[22:23]")
    A("v_pk_add_f32 v[24:25], v[24:25], v[28:29]")
    A("v_pk_add_f32 v[26:27], v[26:27], v[30:31]")
    A("v_pk_add_f32 v[16:17], v[16:17], v[24:25]")
    A("v_pk_add_f32 v[18:19], v[18:19], v[26:27]")
    A("v_cvt_pk_bf16_f32 v16, v16, v17")
    A("v_cvt_pk_bf16_f32 v17, v18, v19")
    A(f"ds_write_b64 v3, v[16:17] offset:{QL}")
    set_flag(2)
    wait_ge(FL_A, 2)
    for t in range(4): A(f"ds_read_b128 v[{16+4*t}:{19+4*t}], v6 offset:{QL+t*64}")
    A(f"s_mov_b32 s6, {f32(math.log2(math.e) / math.sqrt(128.0))}")
    for t in range(4):
        A(f"s_waitcnt lgkmcnt({3-t})")
        for T in range(2):
            c = "0" if t == 0 else f"v[{32+4*T}:{35+4*T}]"
            A(f"v_mfma_f32_16x16x32_bf16 v[{32+4*T}:{35+4*T}], v[{48+16*T+4*t}:{51+16*T+4*t}], v[{16+4*t}:{19+4*t}], {c}")
    A("s_lshl_b32 s7, s5, 10")
    A("v_add_u32 v2, s7, v1")
    A("s_lshl_b32 s7, s5, 2")
    A("v_add_u32 v3, s7, v1")
    for k in range(4): A(f"v_mov_b32 v{44+k}, 0x3f803f80")
    A("v_max3_f32 v40, v32, v33, v34")
    A("v_max3_f32 v41, v35, v36, v37")
    A("v_max3_f32 v40, v40, v38, v39")
    A("v_max_f32 v40, v40, v41")
    allred(40, 41, "v_max_f32", ())
    A("v_mul_f32 v40, s6, v40")
    for k in range(8): A(f"v_fma_f32 v{32+k}, v{32+k}, s6, -v40")
    for k in range(8): A(f"v_exp_f32 v{32+k}, v{32+k}")
    for k in range(4): A(f"v_cvt_pk_bf16_f32 v{32+k}, v{32+2*k}, v{33+2*k}")
    A(f"ds_write_b32 v3, v40 offset:{MX}")
    A(f"ds_write_b128 v2, v[32:35] offset:{PX}")
    set_flag(3)
    wait_ge(FL_A, 3)
    stamp(6)
    A(f"ds_read_b128 v[40:43], v1 offset:{MX}")
    for w in range(4): A(f"ds_read_b128 v[{16+4*w}:{19+4*w}], v1 offset:{PX+w*1024}")
    A("s_waitcnt lgkmcnt(4)")
    A("v_max3_f32 v36, v40, v41, v42")
    A("v_max_f32 v36, v36, v43")
    for w in range(4): A(f"v_sub_f32 v{40+w}, v{40+w}, v36")
    for w in range(4): A(f"v_exp_f32 v{40+w}, v{40+w}")
    A("s_waitcnt lgkmcnt(0)")
    for w in range(4): A(f"v_mfma_f32_16x16x32_bf16 v[{48+4*w}:{51+4*w}], v[44:47], v[{16+4*w}:{19+4*w}], 0")
    A("s_cmp_lt_u32 s5, 2")
    A("s_cbranch_scc1 L_noflag4")
    set_flag(4)
    A("L_noflag4:")
    A("s_and_b32 s7, s4, 63")
    A("s_cmp_eq_u32 s5, 2")
    A("s_cbranch_scc0 L_noml")
    A("s_nop 4")
    A("v_mul_f32 v37, v40, v48")
    for w in range(1, 4): A(f"v_fmac_f32 v37, v{40+w}, v{48+4*w}")
    A("v_mov_b32 v38, s56")
    A("v_mov_b32 v39, s56")
    A("s_lshl_b32 s6, s61, 9")
    A("s_add_u32 s6, s6, s7")
    A("s_lshl_b32 s6, s6, 4")
    A(f"s_add_u32 s6, s6, {ML}")
    A("s_mov_b64 exec, 0xff")
    A("buffer_store_dwordx4 v[36:39], v13, s[12:15], s6 offen sc1")
    A("s_mov_b64 exec, -1")
    A("L_noml:")
    A("s_lshl_b32 s6, s61, 5")
    A("s_add_u32 s6, s6, s5")
    A("s_lshl_b32 s6, s6, 6")
    A("s_add_u32 s6, s6, s7")
    A("s_lshl_b32 s6, s6, 7")
    A(f"s_add_u32 s6, s6, {OP}")
    wait_ge(FL_L, 24)
    stamp(7)
    for kb in range(4):
        for dt in range(2):
            for hh in range(2):
                r = 48 + 8*kb + 4*dt + 2*hh
                A(f"ds_read_b64_tr_b16 v[{r}:{r+1}], v{14+dt} offset:{kb*8192+hh*4096}")
    for kb in range(4):
        for dt in range(2):
            A(f"s_waitcnt lgkmcnt({14-4*kb-2*dt})")
            r = 48 + 8*kb + 4*dt; d = 80 + 8*kb + 4*dt
            A(f"v_mfma_f32_16x16x32_bf16 v[{d}:{d+3}], v[{r}:{r+3}], v[{16+4*kb}:{19+4*kb}], 0")
    for kb in range(4):
        for k in range(4): A(f"v_cndmask_b32 v{80+8*kb+k}, v{80+8*kb+k}, v{84+8*kb+k}, s[98:99]")
        for k in range(4):
            if kb == 0: A(f"v_mul_f32 v{32+k}, v40, v{80+k}")
            else: A(f"v_fmac_f32 v{32+k}, v{40+kb}, v{80+8*kb+k}")
    tag4(32, 32)
    A("buffer_store_dwordx4 v[32:35], v12, s[12:15], s6 offen sc1")
    stamp(8)
    A("s_cmp_eq_u32 s5, 2")
    A("s_cbranch_scc1 L_fin")
    A("s_cmp_eq_u32 s5, 3")
    A("s_cbranch_scc1 L_final")
    A("s_and_b32 s6, s4, 0xfe")
    A("s_add_u32 s6, s6, s5")
    A("s_lshl_b32 s6, s6, 12")
    A(f"s_add_u32 s96, s6, {OP}")
    A("s_lshr_b32 s6, s4, 3")
    A("s_lshl1_add_u32 s6, s6, s5")
    A("s_lshl_b32 s6, s6, 9")
    A(f"s_add_u32 s97, s6, {ML}")
    A("v_lshrrev_b32 v2, 3, v0")
    A("v_lshlrev_b32 v2, 4, v2")
    A("v_lshl_add_u32 v3, v4, 2, v5")
    A("v_lshlrev_b32 v3, 2, v3")
    A("s_lshl_b32 s6, s5, 7")
    A("v_add_u32 v3, s6, v3")
    wait_ge(FL_L, trig_o)
    stamp(9)
    l = lab("op"); poll_head(l)
    for i in range(4): A(f"buffer_load_dwordx4 v[{48+4*i}:{51+4*i}], v2, s[12:15], s97 offen offset:{i*128} sc1")
    for i in range(4): A(f"buffer_load_dwordx4 v[{16+4*i}:{19+4*i}], v1, s[12:15], s96 offen offset:{i*1024} sc1")
    A("s_waitcnt vmcnt(4)")
    for i in range(4): A(f"v_xor_b32 v{50+4*i}, s56, v{50+4*i}")
    A("v_max3_f32 v36, v48, v52, v56")
    A("v_or3_b32 v33, v50, v54, v58")
    A("v_max_f32 v36, v36, v60")
    allred(36, 37, "v_max_f32", (8,))
    for i in range(4): A(f"v_sub_f32 v{40+i}, v{48+4*i}, v36")
    for i in range(4): A(f"v_exp_f32 v{40+i}, v{40+i}")
    A("v_mul_f32 v36, v40, v49")
    for i in range(1, 4): A(f"v_fmac_f32 v36, v{40+i}, v{49+4*i}")
    allred(36, 37, "v_add_f32", (8,))
    A("v_rcp_f32 v36, v36")
    A("s_waitcnt vmcnt(0)")
    untag([16, 20, 24, 28], 32)
    A("v_or3_b32 v32, v32, v33, v62")
    poll_tail(l, 32)
    stamp(10)
    for k in range(4): A(f"v_mul_f32 v{16+k}, v40, v{16+k}")
    for i in range(1, 4):
        for k in range(4): A(f"v_fmac_f32 v{16+k}, v{40+i}, v{16+4*i+k}")
    tred4(16, (8,))
    A("v_mul_f32 v16, v16, v36")
    A("v_cvt_pk_bf16_f32 v16, v16, v16")
    A(f"ds_write_b32 v3, v16 offset:{OA}")
    set_flag(4)
    stamp(11)
    A("s_branch L_fin")
    A("L_final:")
    A("v_lshrrev_b32 v2, 1, v0")
    A(f"v_mul_u32_u24 v2, {PSTR}, v2")
    A("v_and_b32 v3, 1, v0")
    A("v_lshl_add_u32 v2, v3, 4, v2")
    A("s_lshl_b32 s6, s4, 5")
    A("v_add_u32 v2, s6, v2")
    A(f"s_mov_b32 s6, {ZP}")
    A(f"s_mov_b32 s60, {SP}"); A(f"s_mov_b32 s61, {SP+32*PSTR}"); A(f"s_mov_b32 s62, {SP+64*PSTR}"); A(f"s_mov_b32 s63, {SP+96*PSTR}")
    A("v_lshlrev_b32 v118, 16, v118")
    A("v_lshlrev_b32 v119, 16, v119")
    wait_ge(FL_M, 4)
    l = lab("zp"); poll_head(l)
    A("buffer_load_dwordx4 v[16:19], v2, s[12:15], s6 offen sc1")
    A("s_waitcnt vmcnt(0)")
    untag([16], 32)
    poll_tail(l, 32)
    stamp(9)
    tred4(16, (8, 4, 2))
    rne(16, 16)
    A("v_add_f32 v16, v16, v119")
    rne(16, 16)
    A(f"v_mul_f32 v17, {f32(-math.log2(math.e))}, v16")
    A("v_exp_f32 v17, v17")
    A("v_add_f32 v17, 1.0, v17")
    A("v_rcp_f32 v17, v17")
    A("v_mul_f32 v40, v16, v17")
    rne(40, 40)
    wait_ge(FL_L, 64)
    stamp(10)
    l = lab("sp"); poll_head(l)
    for i in range(4): A(f"buffer_load_dwordx4 v[{16+4*i}:{19+4*i}], v2, s[12:15], s{60+i} offen sc1")
    A("s_waitcnt vmcnt(0)")
    untag([16, 20, 24, 28], 32)
    poll_tail(l, 32)
    A("v_pk_add_f32 v[16:17], v[16:17], v[20:21]")
    A("v_pk_add_f32 v[18:19], v[18:19], v[22:23]")
    A("v_pk_add_f32 v[24:25], v[24:25], v[28:29]")
    A("v_pk_add_f32 v[26:27], v[26:27], v[30:31]")
    A("v_pk_add_f32 v[16:17], v[16:17], v[24:25]")
    A("v_pk_add_f32 v[18:19], v[18:19], v[26:27]")
    tred4(16, (8, 4, 2))
    rne(16, 16)
    A("v_mul_f32 v16, v16, v40")
    rne(16, 16)
    A("v_add_f32 v16, v16, v118")
    A("v_cvt_pk_bf16_f32 v16, v16, v16")
    A("s_mov_b32 exec_lo, 0x30003")
    A("s_mov_b32 exec_hi, 0x30003")
    A(f"buffer_store_short v16, v117, s[48:51], 0 offen {outflag}")
    stamp(11)
    A("s_cmp_eq_u32 s4, 0")
    A("s_cbranch_scc0 L_fin")
    A("s_mov_b64 exec, 1")
    A("v_mov_b32 v17, s56")
    A("buffer_store_dword v17, v127, s[12:15], 0 offen sc1")
    A("L_fin:")
    if stamps:
        A("s_mov_b64 exec, 1")
        A("s_waitcnt lgkmcnt(0)")
        A("s_mul_i32 s6, s2, 12")
        A("s_add_u32 s6, s6, s3")
        A(f"s_mul_i32 s6, s6, {NST*8}")
        A(f"s_add_u32 s6, s6, {128<<20}")
        for i in range(NST):
            A(f"v_mov_b32 v4, s{64+2*i}"); A(f"v_mov_b32 v5, s{65+2*i}")
            A(f"buffer_store_dwordx2 v[4:5], v127, s[12:15], s6 offen offset:{8*i}")
            A("s_nop 1")
    A("L_bail:")
    A("L_end:")
    A("s_endpgm")
    A('.section .rodata,"a"'); A(".p2align 6")
    A(f".amdhsa_kernel {KN}_kernel")
    for d in ("next_free_vgpr 128", "next_free_sgpr 102", "accum_offset 128", "group_segment_fixed_size 0", "kernarg_size 104",
              "user_sgpr_count 2", "user_sgpr_kernarg_segment_ptr 1", "system_sgpr_workgroup_id_x 1"):
        L.append("  .amdhsa_" + d)
    A(".end_amdhsa_kernel")
    lines = []
    for x in L: lines.extend(x.split("\n"))
    if stamps:
        i = next(i for i, x in enumerate(lines) if "s_memrealtime s[64:65]" in x)
        lines[i+1:i+1] = [f"    s_mov_b64 s[{64+2*k}:{65+2*k}], 0" for k in range(1, NST)]
    return "\n".join(pad(lines)) + "\n"

if __name__ == "__main__":
    import argparse, ast
    out = sys.argv[1]
    kw = {}
    for a in sys.argv[2:]:
        k, v = a.split("=")
        try: v = ast.literal_eval(v)
        except Exception: pass
        kw[k] = v
    open(out, "w").write(gen(**kw))
```

```python
import sys, math, struct
from asmlib import pad
KN = "recurrent_scan__sliding_block_cached__mixer_channel_mlp__decode"

def f32(x): return "0x%08x" % struct.unpack("<I", struct.pack("<f", x))[0]

QP = 0x010000; HP = 0x030000; ML = 0x050000; ZP = 0x060000; OP = 0x100000; SP = 0x200000
PSTR = 8320
WS_USED = 0x400000
FL_L = 0; FL_A = 16; FL_M = 32; TAGW = 48
OA = 64
HL = 512; HSTR = 288
MX = 1280
QL = 2304; QSTR = 272
XN = 4608; XSTR = 2112
YN = XN + 2 * XSTR
PX = 13056
R0 = 17408; KB = R0 + 32768; VB = KB + 32768; W1B = VB + 32768
LDS_BYTES = W1B + 32768

def gen(stamps=False, W0=8, W1=6, nW0=8, trig_q=10, trig_o=30, trig_h=35, codepf=True, ntflag="nt",
        outflag="sc1", sleep=True, header=True, pollsleep=0, probe=None):
    if probe is not None: stamps = True
    L = []
    def A(s=""): L.append(("    " + s) if not s.endswith(":") and not s.startswith(".") else s)
    uid = [0]
    def lab(n): uid[0] += 1; return f"L_{n}_{uid[0]}"
    NST = 12
    def stamp(i):
        if stamps: A(f"s_memrealtime s[{64+2*i}:{65+2*i}]")
    def srd(d, size):
        A(f"s_mov_b32 s{d+2}, {size}"); A(f"s_mov_b32 s{d+3}, 0x20000")
    def wait_ge(fl, th, t=120):
        l = lab("w")
        A(f"{l}:")
        A(f"ds_read_b128 v[{t}:{t+3}], v127 offset:{fl}")
        A("s_sub_u32 s58, s58, 1")
        A("s_cbranch_scc1 L_bail")
        A("s_waitcnt lgkmcnt(0)")
        A(f"v_min3_u32 v{t}, v{t}, v{t+1}, v{t+2}")
        A(f"v_min_u32 v{t}, v{t}, v{t+3}")
        A(f"v_cmp_gt_u32 vcc, {th}, v{t}")
        A(f"s_cbranch_vccnz {l}")
    def set_flag(val):
        A(f"v_mov_b32 v125, {val}")
        A("s_mov_b64 exec, 1")
        A("ds_write_b32 v126, v125")
        A("s_mov_b64 exec, -1")
    def get_tag():
        A(f"ds_read_b32 v124, v127 offset:{TAGW}")
        A("s_waitcnt lgkmcnt(0)")
        A("v_readfirstlane_b32 s56, v124")
        A("v_mov_b32 v124, 0xffffff00")
        A("s_and_b32 s52, s56, 0xff")
        A("s_bfe_u32 s53, s56, 0x80008")
        A("s_bfe_u32 s54, s56, 0x80010")
        A("s_lshr_b32 s55, s56, 24")
    def tag4(d, s):
        for k in range(4): A(f"v_and_or_b32 v{d+k}, v{s+k}, v124, s{52+k}")
    def untag(regs, bad):
        for b in regs:
            for k in range(4): A(f"v_xor_b32 v{b+k}, s{52+k}, v{b+k}")
        first = True
        for b in regs:
            if first:
                A(f"v_or3_b32 v{bad}, v{b}, v{b+1}, v{b+2}"); A(f"v_or_b32 v{bad}, v{bad}, v{b+3}"); first = False
            else:
                A(f"v_or3_b32 v{bad}, v{bad}, v{b}, v{b+1}"); A(f"v_or3_b32 v{bad}, v{bad}, v{b+2}, v{b+3}")
        A(f"v_and_b32 v{bad}, 0xff, v{bad}")
    def allred(v, t, op, rors):
        for sw in ("32", "16"):
            A(f"v_mov_b32 v{t}, v{v}")
            A(f"v_permlane{sw}_swap_b32 v{v}, v{t}")
            A(f"{op} v{v}, v{v}, v{t}")
        for r in rors:
            A(f"{op}_dpp v{v}, v{v}, v{v} row_ror:{r} row_mask:0xf bank_mask:0xf")
    def tred4(a, rors):
        A(f"v_permlane32_swap_b32 v{a}, v{a+2}")
        A(f"v_permlane32_swap_b32 v{a+1}, v{a+3}")
        A(f"v_add_f32 v{a}, v{a}, v{a+2}")
        A(f"v_add_f32 v{a+1}, v{a+1}, v{a+3}")
        A(f"v_permlane16_swap_b32 v{a}, v{a+1}")
        A(f"v_add_f32 v{a}, v{a}, v{a+1}")
        for r in rors:
            A(f"v_add_f32_dpp v{a}, v{a}, v{a} row_ror:{r} row_mask:0xf bank_mask:0xf")
    def rne(d, s):
        A(f"v_cvt_pk_bf16_f32 v{d}, v{s}, v{s}"); A(f"v_and_b32 v{d}, 0xffff0000, v{d}")
    def poll_tail(l, bad):
        A(f"v_cmp_ne_u32 vcc, 0, v{bad}")
        A(f"s_cbranch_vccnz {l}")
    def poll_head(l):
        A(f"{l}:")
        A("s_sub_u32 s58, s58, 64")
        A("s_cbranch_scc1 L_bail")
    def gemv64(xb, rb, rs_sreg, need_m, need_l, st0):
        A("v_lshrrev_b32 v1, 2, v0")
        A("v_bfe_u32 v2, v0, 3, 2")
        A("v_xor_b32 v2, s5, v2")
        A("v_lshlrev_b32 v2, 5, v2")
        A("v_lshl_add_u32 v2, v1, 7, v2")
        A("v_and_b32 v3, 3, v0")
        A("v_lshl_add_u32 v2, v3, 3, v2")
        A(f"v_add_u32 v2, {rb}, v2")
        A("v_and_b32 v3, 1, v0")
        A(f"v_mul_u32_u24 v3, {XSTR}, v3")
        A("v_lshrrev_b32 v4, 4, v0")
        A("v_lshl_add_u32 v3, v4, 3, v3")
        A(f"s_lshl_b32 s6, s{rs_sreg}, 9")
        A(f"s_add_u32 s6, s6, {xb}")
        A("v_add_u32 v3, s6, v3")
        wait_ge(FL_M, need_m)
        stamp(st0)
        for kb in range(8):
            A(f"ds_read2_b64 v[{16+4*kb}:{19+4*kb}], v3 offset0:{kb*8} offset1:{kb*8+4}")
        get_tag()
        wait_ge(FL_L, need_l)
        stamp(st0 + 1)
        for kb in range(8):
            A(f"ds_read_b64_tr_b16 v[{48+4*kb}:{49+4*kb}], v2 offset:{kb*4096}")
            A(f"ds_read_b64_tr_b16 v[{50+4*kb}:{51+4*kb}], v2 offset:{kb*4096+2048}")
        for kb in range(8):
            A(f"s_waitcnt lgkmcnt({14-2*kb})")
            c = "0" if kb == 0 else "v[8:11]"
            A(f"v_mfma_f32_16x16x32_bf16 v[8:11], v[{48+4*kb}:{51+4*kb}], v[{16+4*kb}:{19+4*kb}], {c}")

    if header:
        L.append(open("cdna_kernels/%s.s.ref" % KN).read().split("; Override launch")[0].rstrip())
    L.append(f"; @launch grid=(256,1,1) block=(768,1,1) lds={LDS_BYTES}")
    A('.amdgcn_target "amdgcn-amd-amdhsa--gfx950"')
    A(".text")
    A(f".globl {KN}_kernel")
    A(".p2align 8")
    A(f".type {KN}_kernel,@function")
    A(f"{KN}_kernel:")
    stamp(0)
    A("s_load_dwordx2 s[8:9], s[0:1], 24")
    A("s_load_dwordx2 s[36:37], s[0:1], 0")
    A("s_load_dwordx2 s[12:13], s[0:1], 96")
    A("v_lshrrev_b32 v1, 6, v0")
    A("s_cmp_ge_u32 s2, 256")
    A("s_cbranch_scc1 L_end")
    A("v_readfirstlane_b32 s3, v1")
    A("v_and_b32 v0, 63, v0")
    A("s_and_b32 s4, s2, 7")
    A("s_lshl_b32 s4, s4, 5")
    A("s_lshr_b32 s6, s2, 3")
    A("s_or_b32 s4, s4, s6")
    A("s_and_b32 s5, s3, 3")
    A("s_cmp_ge_u32 s3, 4")
    A("s_cbranch_scc1 L_notL")
    A("v_lshrrev_b32 v1, 3, v0")
    A("v_and_b32 v2, 6, v1")
    A("v_xor_b32 v2, v0, v2")
    A("v_and_b32 v2, 7, v2")
    A("v_lshlrev_b32 v2, 4, v2")
    A("v_lshl_add_u32 v3, v1, 13, v2")
    A("s_bfe_u32 s6, s4, 0x20004")
    A("s_lshl2_add_u32 s6, s6, s5")
    A("s_lshl_b32 s6, s6, 19")
    A("s_lshr_b32 s7, s4, 6")
    A("s_and_b32 s57, s4, 15")
    A("s_lshl4_add_u32 s7, s7, s57")
    A("s_lshl_b32 s7, s7, 7")
    A("s_add_u32 s6, s6, s7")
    A("s_lshl_b32 s59, s5, 13")
    A(f"s_add_u32 m0, s59, {R0}")
    srd(8, 8388608)
    A("s_waitcnt lgkmcnt(0)")
    cnt = [0]
    ticks = sorted(set([8, 16, 24, 32, 39, trig_q, trig_o, trig_h]))
    ticked = set()
    def Wn(n): return W0 if n < nW0 + W0 else W1
    def pre_issue():
        n = cnt[0]; w = Wn(n)
        if n >= w:
            A(f"s_waitcnt vmcnt({w-1})")
            landed = n - w + 1
            todo = [t for t in ticks if t <= landed and t not in ticked]
            if todo:
                set_flag(max(todo)); ticked.update(todo)
        cnt[0] += 1
    def late_setup():
        A("s_load_dwordx2 s[16:17], s[0:1], 8")
        A("s_load_dwordx2 s[20:21], s[0:1], 16")
        A("s_load_dwordx2 s[24:25], s[0:1], 48")
        A("s_load_dwordx2 s[28:29], s[0:1], 64")
        A("s_load_dwordx2 s[32:33], s[0:1], 32")
        srd(16, 67108864); srd(20, 67108864); srd(28, 7340032); srd(32, 8388608); srd(12, WS_USED if not stamps else 0x10000000)
        A("s_mov_b32 s27, 0x20000")
        A("s_and_b32 s7, s4, 31")
        A("s_cmp_lt_u32 s7, 28")
        A("s_cselect_b32 s26, 7340032, 0")
        A("s_mov_b32 s58, 0x100000")
        A("v_mov_b32 v127, 0")
        A("s_lshl_b32 s57, s5, 2")
        A(f"v_mov_b32 v126, s57")
        A("v_mul_u32_u24 v4, 7168, v1")
        A("v_add_u32 v4, v4, v2")
        A("v_lshrrev_b32 v1, 4, v0")
        A("v_lshlrev_b32 v2, 1, v1")
        A("v_xor_b32 v2, v0, v2")
        A("v_and_b32 v2, 15, v2")
        A("v_lshlrev_b32 v2, 4, v2")
        A("v_lshl_add_u32 v5, v1, 8, v2")
        A("v_xor_b32 v6, 0x80, v5")
        A("v_lshl_add_u32 v7, v1, 11, v2")
        A("s_and_b32 s57, s5, 1")
        A("s_lshl_b32 s57, s57, 7")
        A("v_xor_b32 v7, s57, v7")
        A("v_xor_b32 v8, 0x80, v7")
        A("v_and_b32 v2, 15, v0")
        A("v_lshlrev_b32 v9, 4, v2")
        A("v_lshl_add_u32 v9, v1, 14, v9")
        A("v_and_b32 v10, 1, v1")
        A("v_lshl_add_u32 v10, v2, 1, v10")
        A("v_lshlrev_b32 v10, 5, v10")
        A("v_lshrrev_b32 v11, 5, v0")
        A("v_lshl_add_u32 v10, v11, 4, v10")
        A("v_bfe_u32 v11, v0, 3, 1")
        A("v_lshlrev_b32 v11, 7, v11")
        A("v_lshl_add_u32 v11, v1, 5, v11")
        A("v_and_b32 v2, 1, v0")
        A("v_lshlrev_b32 v2, 4, v2")
        A("v_mov_b32 v1, 0xffff")
        A("v_lshlrev_b32 v1, v2, v1")
        A("v_bfe_u32 v2, v0, 1, 2")
        for r in range(4):
            A(f"v_cmp_eq_u32 vcc, {r}, v2")
            A(f"v_cndmask_b32 v{12+r}, 0, v1, vcc")
        A("s_bfe_u32 s60, s4, 0x10005")
        A("s_lshr_b32 s61, s4, 6")
        A("s_lshl2_add_u32 s6, s60, s61")
        A("s_lshl_b32 s6, s6, 8")
        A("s_add_u32 s6, s6, s7")
        A("s_add_u32 s6, s6, 224")
        A("s_lshl_b32 s6, s6, 15")
        A("s_add_u32 s62, s6, s59")
        A("s_mul_i32 s60, s60, 28")
        A("s_add_u32 s60, s60, s7")
        A("s_lshl_b32 s60, s60, 7")
        A("s_lshl2_add_u32 s61, s61, s5")
        A(f"s_mul_i32 s61, s61, {64*7168}")
        A("s_add_u32 s63, s60, s61")
        A("s_waitcnt lgkmcnt(0)")
        A("s_barrier")
    for i in range(8):
        if i == min(W0, 8): late_setup()
        pre_issue()
        if i == 4: A("s_add_u32 m0, m0, 4096")
        A(f"buffer_load_dwordx4 v3, s[8:11], s6 offen offset:{(i&3)*1024} {ntflag} lds") if i < min(W0, 8) else \
        A(f"buffer_load_dwordx4 v3, s[8:11], s96 offen offset:{(i&3)*1024} {ntflag} lds")
        if i < 7:
            inc = 65536 - 1024 if (i & 3) != 3 else 65536 + 3072
            if i + 1 < min(W0, 8): A(f"s_add_u32 s6, s6, {inc}")
            elif i + 1 == min(W0, 8): A(f"s_add_u32 s96, s6, {inc}")
            else: A(f"s_add_u32 s96, s96, {inc}")
    stamp(1)
    A("s_branch L_Lmain")
    A("L_notL:")
    srd(36, 4096)
    A("v_lshlrev_b32 v1, 4, v0")
    A("v_mov_b32 v127, 0")
    A("s_lshl_b32 s6, s5, 11")
    A("s_setprio 2")
    A("s_and_b32 s7, s3, 14")
    A("s_cmp_eq_u32 s7, 8")
    A("s_cbranch_scc0 L_nox")
    A("s_waitcnt lgkmcnt(0)")
    A("buffer_load_dwordx4 v[4:7], v1, s[36:39], s6 offen")
    A("buffer_load_dwordx4 v[8:11], v1, s[36:39], s6 offen offset:1024")
    A("s_load_dword s57, s[12:13], 0")
    A("L_nox:")
    A("v_lshlrev_b32 v2, 2, v0")
    A("s_cmp_eq_u32 s3, 4")
    A("s_cbranch_scc0 L_noz")
    A("s_mov_b64 exec, 0xfff")
    A("ds_write_b32 v2, v127")
    A("s_mov_b64 exec, -1")
    A("s_waitcnt lgkmcnt(0)")
    A("L_noz:")
    A("s_barrier")
    srd(12, WS_USED if not stamps else 0x10000000)
    A("s_mov_b32 s58, 0x100000")
    A("s_lshl_b32 s6, s3, 2")
    A("v_mov_b32 v126, s6")
    A("s_cmp_lt_u32 s3, 8")
    A("s_cbranch_scc1 L_A")
    A("s_cmp_lt_u32 s5, 2")
    A("s_cbranch_scc1 L_ln")
    set_flag(2)
    A("s_waitcnt lgkmcnt(0)")
    A("s_branch L_Mmain")
    A("L_ln:")
    A(f"s_mul_i32 s6, s5, {XSTR}")
    A(f"s_add_u32 s6, s6, {XN}")
    A("v_add_u32 v1, s6, v1")
    A("s_mov_b32 s60, 1")
    A("s_waitcnt lgkmcnt(0)")
    A("s_mul_i32 s57, s57, 1664525")
    A("s_add_u32 s57, s57, 1013904223")
    A("v_mov_b32 v2, s57")
    A(f"ds_write_b32 v127, v2 offset:{TAGW}")
    A("s_waitcnt vmcnt(0)")
    stamp(1)
    A("L_lnloop:")
    for k in range(8):
        A(f"v_lshlrev_b32 v{16+2*k}, 16, v{4+k}")
        A(f"v_and_b32 v{17+2*k}, 0xffff0000, v{4+k}")
    for k in range(4): A(f"v_pk_add_f32 v[{32+2*k}:{33+2*k}], v[{16+4*k}:{17+4*k}], v[{18+4*k}:{19+4*k}]")
    A("v_pk_add_f32 v[32:33], v[32:33], v[34:35]")
    A("v_pk_add_f32 v[36:37], v[36:37], v[38:39]")
    A("v_pk_add_f32 v[32:33], v[32:33], v[36:37]")
    A("v_add_f32 v12, v32, v33")
    allred(12, 13, "v_add_f32", (8, 4, 2, 1))
    A(f"v_mul_f32 v12, {f32(1/1024)}, v12")
    for k in range(8): A(f"v_pk_add_f32 v[{32+2*k}:{33+2*k}], v[{16+2*k}:{17+2*k}], v[12:13] op_sel_hi:[1,0] neg_lo:[0,1] neg_hi:[0,1]")
    A("v_pk_mul_f32 v[14:15], v[32:33], v[32:33]")
    A("v_pk_mul_f32 v[48:49], v[34:35], v[34:35]")
    for k in range(2, 8, 2):
        A(f"v_pk_fma_f32 v[14:15], v[{32+2*k}:{33+2*k}], v[{32+2*k}:{33+2*k}], v[14:15]")
        A(f"v_pk_fma_f32 v[48:49], v[{34+2*k}:{35+2*k}], v[{34+2*k}:{35+2*k}], v[48:49]")
    A("v_pk_add_f32 v[14:15], v[14:15], v[48:49]")
    A("v_add_f32 v14, v14, v15")
    rne(12, 12)
    for k in range(8): A(f"v_pk_add_f32 v[{32+2*k}:{33+2*k}], v[{16+2*k}:{17+2*k}], v[12:13] op_sel_hi:[1,0] neg_lo:[0,1] neg_hi:[0,1]")
    allred(14, 15, "v_add_f32", (8, 4, 2, 1))
    A(f"v_mul_f32 v14, {f32(1/1024)}, v14")
    rne(14, 14)
    A(f"v_add_f32 v14, {f32(1e-5)}, v14")
    rne(14, 14)
    A("v_sqrt_f32 v14, v14")
    for k in range(8): A(f"v_cvt_pk_bf16_f32 v{4+k}, v{32+2*k}, v{33+2*k}")
    rne(14, 14)
    A("v_rcp_f32 v14, v14")
    for k in range(8):
        A(f"v_lshlrev_b32 v{16+2*k}, 16, v{4+k}")
        A(f"v_and_b32 v{17+2*k}, 0xffff0000, v{4+k}")
    for k in range(8): A(f"v_pk_mul_f32 v[{16+2*k}:{17+2*k}], v[{16+2*k}:{17+2*k}], v[14:15] op_sel_hi:[1,0]")
    for k in range(8): A(f"v_cvt_pk_bf16_f32 v{4+k}, v{16+2*k}, v{17+2*k}")
    A("ds_write_b128 v1, v[4:7]")
    A("ds_write_b128 v1, v[8:11] offset:1024")
    set_flag("s60")
    A(f"v_add_u32 v1, {YN-XN}, v1")
    A("s_add_u32 s60, s60, 1")
    A("s_cmp_eq_u32 s60, 2")
    A("s_cbranch_scc1 L_lnloop")
    stamp(2)
    A("L_Mmain:")
    A("s_load_dwordx2 s[40:41], s[0:1], 56")
    srd(40, 7168)
    A("s_lshr_b32 s61, s4, 6")
    A("s_lshr_b32 s62, s4, 3")
    A("v_and_b32 v90, 31, v0")
    A("v_min_u32 v90, 27, v90")
    A("s_mul_i32 s6, s62, 28")
    A("v_add_u32 v91, s6, v90")
    A("v_lshrrev_b32 v92, 5, v0")
    A("v_mul_u32_u24 v93, 14336, v92")
    A("v_lshl_add_u32 v93, v91, 4, v93")
    A("v_lshlrev_b32 v91, 3, v91")
    A(f"v_mul_u32_u24 v92, {HSTR}, v92")
    A("v_lshl_add_u32 v92, v90, 3, v92")
    A("s_waitcnt lgkmcnt(0)")
    A("s_cmp_eq_u32 s5, 0")
    A("s_cbranch_scc0 L_nob1")
    A("buffer_load_dwordx2 v[94:95], v91, s[40:43], 0 offen")
    A("L_nob1:")
    gemv64(YN, W1B, 61, 2, 32, 3)
    A("s_and_b32 s7, s4, 31")
    A("s_cmp_ge_u32 s7, 28")
    A("s_cbranch_scc1 L_nohp")
    A("s_bfe_u32 s6, s4, 0x10005")
    A("s_mul_i32 s6, s6, 28")
    A("s_add_u32 s6, s6, s7")
    A("s_lshl2_add_u32 s6, s6, s5")
    A("s_lshl_b32 s6, s6, 6")
    A(f"s_mul_i32 s7, s61, {2*14336}")
    A("s_add_u32 s6, s6, s7")
    A(f"s_add_u32 s6, s6, {HP}")
    A("v_and_b32 v1, 1, v0")
    A("v_mul_u32_u24 v1, 14336, v1")
    A("v_and_b32 v2, 48, v0")
    A("v_add_u32 v1, v1, v2")
    tag4(12, 8)
    A("s_mov_b32 exec_lo, 0x30003")
    A("s_mov_b32 exec_hi, 0x30003")
    A("buffer_store_dwordx4 v[12:15], v1, s[12:15], s6 offen sc1")
    A("s_mov_b64 exec, -1")
    A("L_nohp:")
    stamp(5)
    A("v_lshrrev_b32 v1, 2, v0")
    A("v_and_b32 v2, 7, v1")
    A("s_lshl_b32 s6, s5, 1")
    A("v_xor_b32 v2, s6, v2")
    A("v_lshlrev_b32 v2, 5, v2")
    A("v_lshl_add_u32 v2, v1, 8, v2")
    A("v_and_b32 v3, 3, v0")
    A("v_lshl_add_u32 v2, v3, 3, v2")
    A(f"v_add_u32 v2, {R0}, v2")
    A("v_xor_b32 v3, 32, v2")
    A("v_and_b32 v4, 1, v0")
    A(f"v_mul_u32_u24 v5, {HSTR}, v4")
    A("v_lshrrev_b32 v6, 4, v0")
    A("v_lshl_add_u32 v5, v6, 3, v5")
    A(f"v_add_u32 v5, {HL}, v5")
    A("v_bfe_u32 v7, v0, 1, 1")
    A("v_lshl_add_u32 v6, v7, 2, v6")
    A("v_lshlrev_b32 v6, 5, v6")
    A("v_lshl_add_u32 v6, v4, 4, v6")
    A("v_cmp_eq_u32 s[98:99], 1, v7")
    A(f"s_mul_i32 s6, s62, {PSTR}")
    A("s_and_b32 s7, s4, 7")
    A("s_lshl2_add_u32 s7, s7, s5")
    A("s_lshl_b32 s7, s7, 8")
    A("s_add_u32 s6, s6, s7")
    A(f"s_add_u32 s63, s6, {ZP}")
    A("s_cmp_eq_u32 s5, 0")
    A("s_cbranch_scc1 L_hgather")
    set_flag(3)
    A("s_branch L_hdone")
    A("L_hgather:")
    wait_ge(FL_L, trig_h)
    stamp(6)
    l = lab("hp"); poll_head(l)
    for rs in range(4):
        A(f"s_mov_b32 s6, {HP + rs*2*14336}")
        A(f"buffer_load_dwordx4 v[{96+4*rs}:{99+4*rs}], v93, s[12:15], s6 offen sc1")
    A("s_waitcnt vmcnt(0)")
    untag([96, 100, 104, 108], 112)
    poll_tail(l, 112)
    stamp(7)
    A("v_pk_add_f32 v[96:97], v[96:97], v[100:101]")
    A("v_pk_add_f32 v[98:99], v[98:99], v[102:103]")
    A("v_pk_add_f32 v[104:105], v[104:105], v[108:109]")
    A("v_pk_add_f32 v[106:107], v[106:107], v[110:111]")
    A("v_pk_add_f32 v[96:97], v[96:97], v[104:105]")
    A("v_pk_add_f32 v[98:99], v[98:99], v[106:107]")
    A("v_cvt_pk_bf16_f32 v100, v96, v97")
    A("v_cvt_pk_bf16_f32 v101, v98, v99")
    for k in range(2):
        A(f"v_lshlrev_b32 v{96+2*k}, 16, v{100+k}"); A(f"v_and_b32 v{97+2*k}, 0xffff0000, v{100+k}")
        A(f"v_lshlrev_b32 v{104+2*k}, 16, v{94+k}"); A(f"v_and_b32 v{105+2*k}, 0xffff0000, v{94+k}")
    A("v_pk_add_f32 v[96:97], v[96:97], v[104:105]")
    A("v_pk_add_f32 v[98:99], v[98:99], v[106:107]")
    A("v_cvt_pk_bf16_f32 v100, v96, v97")
    A("v_cvt_pk_bf16_f32 v101, v98, v99")
    for k in range(2):
        A(f"v_lshlrev_b32 v{96+2*k}, 16, v{100+k}"); A(f"v_and_b32 v{97+2*k}, 0xffff0000, v{100+k}")
    kk = -2.0 * math.sqrt(2.0 / math.pi) * math.log2(math.e)
    A(f"s_mov_b32 s6, {f32(kk*0.044715)}")
    A(f"v_mov_b32 v108, {f32(kk)}")
    for k in range(4): A(f"v_mul_f32 v{100+k}, v{96+k}, v{96+k}")
    for k in range(4): A(f"v_fma_f32 v{100+k}, v{100+k}, s6, v108")
    for k in range(4): A(f"v_mul_f32 v{100+k}, v{100+k}, v{96+k}")
    for k in range(4): A(f"v_exp_f32 v{100+k}, v{100+k}")
    for k in range(4): A(f"v_add_f32 v{100+k}, 1.0, v{100+k}")
    for k in range(4): A(f"v_rcp_f32 v{100+k}, v{100+k}")
    for k in range(4): A(f"v_mul_f32 v{96+k}, v{96+k}, v{100+k}")
    A("v_cvt_pk_bf16_f32 v100, v96, v97")
    A("v_cvt_pk_bf16_f32 v101, v98, v99")
    A(f"ds_write_b64 v92, v[100:101] offset:{HL}")
    set_flag(3)
    A("L_hdone:")
    wait_ge(FL_L, 39)
    stamp(8)
    for kk_ in range(7):
        A(f"ds_read_b64_tr_b16 v[{16+2*kk_}:{17+2*kk_}], v2 offset:{kk_*4096}")
        A(f"ds_read_b64_tr_b16 v[{32+2*kk_}:{33+2*kk_}], v3 offset:{kk_*4096}")
    wait_ge(FL_M, 3)
    stamp(9)
    for kb in range(3): A(f"ds_read2_b64 v[{48+4*kb}:{51+4*kb}], v5 offset0:{kb*8} offset1:{kb*8+4}")
    A("ds_read_b64 v[60:61], v5 offset:192")
    A("s_waitcnt lgkmcnt(0)")
    A("v_mfma_f32_16x16x16_bf16 v[8:11], v[28:29], v[60:61], 0")
    A("v_mfma_f32_16x16x16_bf16 v[12:15], v[44:45], v[60:61], 0")
    for kb in range(3):
        A(f"v_mfma_f32_16x16x32_bf16 v[8:11], v[{16+4*kb}:{19+4*kb}], v[{48+4*kb}:{51+4*kb}], v[8:11]")
        A(f"v_mfma_f32_16x16x32_bf16 v[12:15], v[{32+4*kb}:{35+4*kb}], v[{48+4*kb}:{51+4*kb}], v[12:15]")
    for k in range(4): A(f"v_cndmask_b32 v{8+k}, v{8+k}, v{12+k}, s[98:99]")
    tag4(8, 8)
    A("s_mov_b32 exec_lo, 0xf000f")
    A("s_mov_b32 exec_hi, 0xf000f")
    A("buffer_store_dwordx4 v[8:11], v6, s[12:15], s63 offen sc1")
    A("s_mov_b64 exec, -1")
    set_flag(4)
    stamp(10)
    A("s_branch L_fin")

    A("L_Lmain:")
    if W0 >= 8: late_setup()
    for name, rb, sr in (("k", KB, 16), ("v", VB, 20)):
        for i in range(8):
            pre_issue()
            if i == 0: A(f"s_add_u32 m0, s59, {rb}"); so = "s62"
            if i == 4: A("s_add_u32 m0, m0, 4096"); A("s_add_u32 s6, s62, 4096"); so = "s6"
            A(f"buffer_load_dwordx4 v{5+(i&1)}, s[{sr}:{sr+3}], {so} offen offset:{(i&3)*1024} {ntflag} lds")
        stamp(2 if name == "k" else 3)
    for i in range(8):
        pre_issue()
        if i == 0: A(f"s_add_u32 m0, s59, {W1B}")
        if i == 4: A("s_add_u32 m0, m0, 4096")
        A(f"buffer_load_dwordx4 v4, s[24:27], s63 offen offset:{(i&3)*1024} {ntflag} lds")
        if i < 7: A(f"s_add_u32 s63, s63, {8*7168 - 1024 if (i & 3) != 3 else 8*7168 + 3072}")
    stamp(4)
    wait_ge(FL_A, 1)
    A("s_lshr_b32 s6, s4, 3")
    A("s_lshl2_add_u32 s6, s6, s5")
    A(f"s_mul_i32 s6, s6, {28*2048}")
    A("s_and_b32 s7, s4, 7")
    A("s_lshl_b32 s7, s7, 8")
    A("s_add_u32 s6, s6, s7")
    A("s_mul_i32 s7, s5, 7168")
    for i in range(7):
        pre_issue()
        if i == 0: A(f"s_add_u32 m0, s7, {R0}")
        if i == 4: A("s_add_u32 m0, m0, 4096")
        A(f"buffer_load_dwordx4 v{7+(i&1)}, s[28:31], s6 offen offset:{(i&3)*1024} {ntflag} lds")
        if i < 6: A(f"s_add_u32 s6, s6, {8192 - 1024 if (i & 3) != 3 else 8192 + 3072}")
    stamp(5)
    A("s_lshr_b32 s60, s4, 1")
    A("s_and_b32 s7, s4, 1")
    A("s_lshl2_add_u32 s61, s7, s5")
    A("s_lshl_b32 s6, s60, 8")
    A("s_add_u32 s6, s6, s61")
    A("s_lshl_b32 s6, s6, 8")
    for t in range(8):
        pre_issue()
        A(f"buffer_load_dwordx4 v[{16+4*t}:{19+4*t}], v9, s[32:35], s6 offen offset:{(t&1)*2048} {ntflag}")
        if t & 1 and t < 7: A("s_add_u32 s6, s6, 4096")
    for t in [t for t in ticks if t not in ticked]:
        A(f"s_waitcnt vmcnt({47-t})"); set_flag(t)
    stamp(6)
    A(f"s_mul_i32 s6, s60, {PSTR}")
    A("s_lshl_b32 s61, s61, 10")
    A("s_add_u32 s6, s6, s61")
    A(f"s_add_u32 s6, s6, {SP}")
    get_tag()
    wait_ge(FL_A, 4)
    stamp(7)
    A(f"ds_read_b128 v[48:51], v11 offset:{OA}")
    A(f"ds_read_b128 v[52:55], v11 offset:{OA+16}")
    A("s_waitcnt lgkmcnt(0)")
    for t in range(8):
        for r in range(4): A(f"v_and_b32 v{56+4*t+r}, v{48+t}, v{12+r}")
    for t in range(8):
        A(f"s_waitcnt vmcnt({7-t})")
        c = "0" if t == 0 else "v[4:7]"
        A(f"v_mfma_f32_16x16x32_bf16 v[4:7], v[{56+4*t}:{59+4*t}], v[{16+4*t}:{19+4*t}], {c}")
    stamp(8)
    tag4(4, 4)
    A("buffer_store_dwordx4 v[4:7], v10, s[12:15], s6 offen sc1")
    set_flag(64)
    stamp(9)
    A("s_branch L_fin")

    A("L_A:")
    A("s_load_dwordx2 s[44:45], s[0:1], 72")
    A("s_load_dwordx2 s[48:49], s[0:1], 80")
    srd(44, 2048); srd(48, 4096)
    A("s_lshr_b32 s61, s4, 6")
    A("s_bfe_u32 s60, s4, 0x10005")
    A("s_bfe_u32 s62, s4, 0x20004")
    A("v_lshrrev_b32 v1, 4, v0")
    A("s_lshl_b32 s6, s4, 2")
    A("v_add_lshl_u32 v116, v1, s6, 1")
    A("v_and_b32 v2, 1, v0")
    A("v_lshl_add_u32 v117, v2, 11, v116")
    A("s_waitcnt lgkmcnt(0)")
    A("s_cmp_eq_u32 s5, 3")
    A("s_cbranch_scc0 L_nofin0")
    A("buffer_load_ushort v118, v117, s[36:39], 0 offen")
    A("buffer_load_ushort v119, v116, s[44:47], 0 offen")
    A("buffer_load_ushort v115, v117, s[48:51], 0 offen")
    A("v_mul_u32_u24 v2, 0x3f0000, v2")
    A("buffer_load_dword v114, v2, s[12:15], 0 offen offset:128")
    A("L_nofin0:")
    if codepf:
        A("s_and_b32 s6, s4, 31")
        A("s_lshl2_add_u32 s6, s6, s5")
        A(f"s_cmp_eq_u32 s6, {28*4+2}")
        A("s_cbranch_scc0 L_nopf")
        A("s_getpc_b64 s[6:7]")
        A("L_pc:")
        A(f"s_sub_u32 s6, s6, L_pc-{KN}_kernel")
        A("s_subb_u32 s7, s7, 0")
        A(f"v_add_u32 v1, ((L_end-{KN}_kernel)>>7)-63, v0")
        A("v_max_i32 v1, 0, v1")
        A("v_lshlrev_b32 v1, 7, v1")
        A("v_mov_b32 v3, s7")
        A("v_add_co_u32 v2, vcc, s6, v1")
        A("v_addc_co_u32 v3, vcc, 0, v3, vcc")
        A("global_load_dword v113, v[2:3], off")
        A("L_nopf:")
    gemv64(XN, R0, 62, 1, 8, 1)
    set_flag(1)
    A("s_lshl3_add_u32 s6, s61, s62")
    A("s_lshl_b32 s6, s6, 12")
    A("s_and_b32 s7, s4, 15")
    A("s_lshl2_add_u32 s7, s7, s5")
    A("s_lshl_b32 s7, s7, 6")
    A("s_add_u32 s6, s6, s7")
    A(f"s_add_u32 s6, s6, {QP}")
    A("v_and_b32 v1, 1, v0")
    A("v_lshlrev_b32 v1, 14, v1")
    A("v_and_b32 v2, 48, v0")
    A("v_add_u32 v1, v1, v2")
    tag4(12, 8)
    A("s_mov_b32 exec_lo, 0x30003")
    A("s_mov_b32 exec_hi, 0x30003")
    A("buffer_store_dwordx4 v[12:15], v1, s[12:15], s6 offen sc1")
    A("s_mov_b64 exec, -1")
    stamp(3)
    A("v_lshlrev_b32 v1, 4, v0")
    A("s_lshl1_add_u32 s6, s61, s60")
    A("s_lshl4_add_u32 s6, s6, s5")
    A("s_lshl_b32 s6, s6, 10")
    A(f"s_add_u32 s6, s6, {QP}")
    A("v_add_u32 v2, s6, v1")
    A("v_lshrrev_b32 v3, 5, v0")
    A("s_lshl_b32 s6, s5, 1")
    A("v_add_u32 v3, s6, v3")
    A(f"v_mul_u32_u24 v3, {QSTR}, v3")
    A("v_and_b32 v4, 31, v0")
    A("v_lshl_add_u32 v3, v4, 3, v3")
    A("v_and_b32 v4, 7, v0")
    A("v_lshrrev_b32 v5, 4, v0")
    A(f"v_mul_u32_u24 v6, {QSTR}, v4")
    A("v_lshl_add_u32 v6, v5, 4, v6")
    A("v_lshlrev_b32 v7, 1, v4")
    A("v_xor_b32 v7, v7, v5")
    A("v_lshlrev_b32 v7, 4, v7")
    A("v_and_b32 v8, 15, v0")
    A("v_lshl_add_u32 v7, v8, 8, v7")
    A("s_lshl_b32 s6, s5, 13")
    A(f"s_add_u32 s6, s6, {KB}")
    A("v_add_u32 v8, s6, v7")
    A("v_xor_b32 v9, 64, v8")
    A("v_xor_b32 v10, 0x80, v8")
    A("v_xor_b32 v11, 0xc0, v8")
    A("v_lshlrev_b32 v12, 15, v4")
    A("v_and_b32 v13, 8, v0")
    A("v_lshl_add_u32 v12, v13, 3, v12")
    A("v_lshl_add_u32 v12, v5, 4, v12")
    A("v_cmp_eq_u32 s[98:99], 8, v13")
    A("v_lshlrev_b32 v13, 10, v4")
    A("v_lshrrev_b32 v14, 2, v0")
    A("v_and_b32 v15, 7, v14")
    A("s_lshl_b32 s6, s5, 1")
    A("v_xor_b32 v15, s6, v15")
    A("v_lshlrev_b32 v15, 5, v15")
    A("v_lshl_add_u32 v14, v14, 8, v15")
    A("v_and_b32 v15, 3, v0")
    A("v_lshl_add_u32 v14, v15, 3, v14")
    A(f"v_add_u32 v14, {VB}, v14")
    A("v_xor_b32 v15, 32, v14")
    A("s_mov_b32 s96, 4096"); A("s_mov_b32 s97, 8192"); A("s_mov_b32 s57, 12288")
    def qloads():
        for rs, so in enumerate(("0", "s96", "s97", "s57")):
            A(f"buffer_load_dwordx4 v[{16+4*rs}:{19+4*rs}], v2, s[12:15], {so} offen sc1")
    wait_ge(FL_L, trig_q)
    stamp(4)
    qloads()
    wait_ge(FL_L, 16)
    for T in range(2):
        for t in range(4): A(f"ds_read_b128 v[{48+16*T+4*t}:{51+16*T+4*t}], v{8+t} offset:{T*4096}")
    A("s_branch L_qchk")
    l = lab("qp"); poll_head(l)
    qloads()
    A("L_qchk:")
    A("s_waitcnt vmcnt(0)")
    untag([16, 20, 24, 28], 32)
    poll_tail(l, 32)
    stamp(5)
    A("v_pk_add_f32 v[16:17], v[16:17], v[20:21]")
    A("v_pk_add_f32 v[18:19], v[18:19], v[22:23]")
    A("v_pk_add_f32 v[24:25], v[24:25], v[28:29]")
    A("v_pk_add_f32 v[26:27], v[26:27], v[30:31]")
    A("v_pk_add_f32 v[16:17], v[16:17], v[24:25]")
    A("v_pk_add_f32 v[18:19], v[18:19], v[26:27]")
    A("v_cvt_pk_bf16_f32 v16, v16, v17")
    A("v_cvt_pk_bf16_f32 v17, v18, v19")
    A(f"ds_write_b64 v3, v[16:17] offset:{QL}")
    set_flag(2)
    wait_ge(FL_A, 2)
    for t in range(4): A(f"ds_read_b128 v[{16+4*t}:{19+4*t}], v6 offset:{QL+t*64}")
    A(f"s_mov_b32 s6, {f32(math.log2(math.e) / math.sqrt(128.0))}")
    for t in range(4):
        A(f"s_waitcnt lgkmcnt({3-t})")
        for T in range(2):
            c = "0" if t == 0 else f"v[{32+4*T}:{35+4*T}]"
            A(f"v_mfma_f32_16x16x32_bf16 v[{32+4*T}:{35+4*T}], v[{48+16*T+4*t}:{51+16*T+4*t}], v[{16+4*t}:{19+4*t}], {c}")
    A("s_lshl_b32 s7, s5, 10")
    A("v_add_u32 v2, s7, v1")
    A("s_lshl_b32 s7, s5, 2")
    A("v_add_u32 v3, s7, v1")
    for k in range(4): A(f"v_mov_b32 v{44+k}, 0x3f803f80")
    A("v_max3_f32 v40, v32, v33, v34")
    A("v_max3_f32 v41, v35, v36, v37")
    A("v_max3_f32 v40, v40, v38, v39")
    A("v_max_f32 v40, v40, v41")
    allred(40, 41, "v_max_f32", ())
    A("v_mul_f32 v40, s6, v40")
    for k in range(8): A(f"v_fma_f32 v{32+k}, v{32+k}, s6, -v40")
    for k in range(8): A(f"v_exp_f32 v{32+k}, v{32+k}")
    for k in range(4): A(f"v_cvt_pk_bf16_f32 v{32+k}, v{32+2*k}, v{33+2*k}")
    A(f"ds_write_b32 v3, v40 offset:{MX}")
    A(f"ds_write_b128 v2, v[32:35] offset:{PX}")
    set_flag(3)
    wait_ge(FL_A, 3)
    stamp(6)
    A(f"ds_read_b128 v[40:43], v1 offset:{MX}")
    for w in range(4): A(f"ds_read_b128 v[{16+4*w}:{19+4*w}], v1 offset:{PX+w*1024}")
    A("s_waitcnt lgkmcnt(4)")
    A("v_max3_f32 v36, v40, v41, v42")
    A("v_max_f32 v36, v36, v43")
    for w in range(4): A(f"v_sub_f32 v{40+w}, v{40+w}, v36")
    for w in range(4): A(f"v_exp_f32 v{40+w}, v{40+w}")
    A("s_waitcnt lgkmcnt(0)")
    for w in range(4): A(f"v_mfma_f32_16x16x32_bf16 v[{48+4*w}:{51+4*w}], v[44:47], v[{16+4*w}:{19+4*w}], 0")
    A("s_cmp_lt_u32 s5, 2")
    A("s_cbranch_scc1 L_noflag4")
    set_flag(4)
    A("L_noflag4:")
    A("s_and_b32 s7, s4, 63")
    A("s_cmp_eq_u32 s5, 2")
    A("s_cbranch_scc0 L_noml")
    A("s_nop 4")
    A("v_mul_f32 v37, v40, v48")
    for w in range(1, 4): A(f"v_fmac_f32 v37, v{40+w}, v{48+4*w}")
    A("v_mov_b32 v38, s56")
    A("v_mov_b32 v39, s56")
    A("s_lshl_b32 s6, s61, 9")
    A("s_add_u32 s6, s6, s7")
    A("s_lshl_b32 s6, s6, 4")
    A(f"s_add_u32 s6, s6, {ML}")
    A("s_mov_b64 exec, 0xff")
    A("buffer_store_dwordx4 v[36:39], v13, s[12:15], s6 offen sc1")
    A("s_mov_b64 exec, -1")
    A("L_noml:")
    A("s_lshl_b32 s6, s61, 5")
    A("s_add_u32 s6, s6, s5")
    A("s_lshl_b32 s6, s6, 6")
    A("s_add_u32 s6, s6, s7")
    A("s_lshl_b32 s6, s6, 7")
    A(f"s_add_u32 s6, s6, {OP}")
    wait_ge(FL_L, 24)
    stamp(7)
    for kb in range(4):
        for dt in range(2):
            for hh in range(2):
                r = 48 + 8*kb + 4*dt + 2*hh
                A(f"ds_read_b64_tr_b16 v[{r}:{r+1}], v{14+dt} offset:{kb*8192+hh*4096}")
    for kb in range(4):
        for dt in range(2):
            A(f"s_waitcnt lgkmcnt({14-4*kb-2*dt})")
            r = 48 + 8*kb + 4*dt; d = 80 + 8*kb + 4*dt
            A(f"v_mfma_f32_16x16x32_bf16 v[{d}:{d+3}], v[{r}:{r+3}], v[{16+4*kb}:{19+4*kb}], 0")
    for kb in range(4):
        for k in range(4): A(f"v_cndmask_b32 v{80+8*kb+k}, v{80+8*kb+k}, v{84+8*kb+k}, s[98:99]")
        for k in range(4):
            if kb == 0: A(f"v_mul_f32 v{32+k}, v40, v{80+k}")
            else: A(f"v_fmac_f32 v{32+k}, v{40+kb}, v{80+8*kb+k}")
    tag4(32, 32)
    A("buffer_store_dwordx4 v[32:35], v12, s[12:15], s6 offen sc1")
    stamp(8)
    A("s_cmp_eq_u32 s5, 2")
    A("s_cbranch_scc1 L_fin")
    A("s_cmp_eq_u32 s5, 3")
    A("s_cbranch_scc1 L_final")
    A("s_and_b32 s6, s4, 0xfe")
    A("s_add_u32 s6, s6, s5")
    A("s_lshl_b32 s6, s6, 12")
    A(f"s_add_u32 s96, s6, {OP}")
    A("s_lshr_b32 s6, s4, 3")
    A("s_lshl1_add_u32 s6, s6, s5")
    A("s_lshl_b32 s6, s6, 9")
    A(f"s_add_u32 s97, s6, {ML}")
    A("v_lshrrev_b32 v2, 3, v0")
    A("v_lshlrev_b32 v2, 4, v2")
    A("v_lshl_add_u32 v3, v4, 2, v5")
    A("v_lshlrev_b32 v3, 2, v3")
    A("s_lshl_b32 s6, s5, 7")
    A("v_add_u32 v3, s6, v3")
    wait_ge(FL_L, trig_o)
    stamp(9)
    l = lab("op"); poll_head(l)
    for i in range(4): A(f"buffer_load_dwordx4 v[{48+4*i}:{51+4*i}], v2, s[12:15], s97 offen offset:{i*128} sc1")
    for i in range(4): A(f"buffer_load_dwordx4 v[{16+4*i}:{19+4*i}], v1, s[12:15], s96 offen offset:{i*1024} sc1")
    A("s_waitcnt vmcnt(4)")
    for i in range(4): A(f"v_xor_b32 v{50+4*i}, s56, v{50+4*i}")
    A("v_max3_f32 v36, v48, v52, v56")
    A("v_or3_b32 v33, v50, v54, v58")
    A("v_max_f32 v36, v36, v60")
    allred(36, 37, "v_max_f32", (8,))
    for i in range(4): A(f"v_sub_f32 v{40+i}, v{48+4*i}, v36")
    for i in range(4): A(f"v_exp_f32 v{40+i}, v{40+i}")
    A("v_mul_f32 v36, v40, v49")
    for i in range(1, 4): A(f"v_fmac_f32 v36, v{40+i}, v{49+4*i}")
    allred(36, 37, "v_add_f32", (8,))
    A("v_rcp_f32 v36, v36")
    A("s_waitcnt vmcnt(0)")
    untag([16, 20, 24, 28], 32)
    A("v_or3_b32 v32, v32, v33, v62")
    poll_tail(l, 32)
    stamp(10)
    for k in range(4): A(f"v_mul_f32 v{16+k}, v40, v{16+k}")
    for i in range(1, 4):
        for k in range(4): A(f"v_fmac_f32 v{16+k}, v{40+i}, v{16+4*i+k}")
    tred4(16, (8,))
    A("v_mul_f32 v16, v16, v36")
    A("v_cvt_pk_bf16_f32 v16, v16, v16")
    A(f"ds_write_b32 v3, v16 offset:{OA}")
    set_flag(4)
    stamp(11)
    A("s_branch L_fin")
    A("L_final:")
    A("v_lshrrev_b32 v2, 1, v0")
    A(f"v_mul_u32_u24 v2, {PSTR}, v2")
    A("v_and_b32 v3, 1, v0")
    A("v_lshl_add_u32 v2, v3, 4, v2")
    A("s_lshl_b32 s6, s4, 5")
    A("v_add_u32 v2, s6, v2")
    A(f"s_mov_b32 s6, {ZP}")
    A(f"s_mov_b32 s60, {SP}"); A(f"s_mov_b32 s61, {SP+32*PSTR}"); A(f"s_mov_b32 s62, {SP+64*PSTR}"); A(f"s_mov_b32 s63, {SP+96*PSTR}")
    A("v_lshlrev_b32 v118, 16, v118")
    A("v_lshlrev_b32 v119, 16, v119")
    wait_ge(FL_M, 4)
    l = lab("zp"); poll_head(l)
    A("buffer_load_dwordx4 v[16:19], v2, s[12:15], s6 offen sc1")
    A("s_waitcnt vmcnt(0)")
    untag([16], 32)
    poll_tail(l, 32)
    stamp(9)
    tred4(16, (8, 4, 2))
    rne(16, 16)
    A("v_add_f32 v16, v16, v119")
    rne(16, 16)
    A(f"v_mul_f32 v17, {f32(-math.log2(math.e))}, v16")
    A("v_exp_f32 v17, v17")
    A("v_add_f32 v17, 1.0, v17")
    A("v_rcp_f32 v17, v17")
    A("v_mul_f32 v40, v16, v17")
    rne(40, 40)
    wait_ge(FL_L, 64)
    stamp(10)
    l = lab("sp"); poll_head(l)
    for i in range(4): A(f"buffer_load_dwordx4 v[{16+4*i}:{19+4*i}], v2, s[12:15], s{60+i} offen sc1")
    A("s_waitcnt vmcnt(0)")
    untag([16, 20, 24, 28], 32)
    poll_tail(l, 32)
    A("v_pk_add_f32 v[16:17], v[16:17], v[20:21]")
    A("v_pk_add_f32 v[18:19], v[18:19], v[22:23]")
    A("v_pk_add_f32 v[24:25], v[24:25], v[28:29]")
    A("v_pk_add_f32 v[26:27], v[26:27], v[30:31]")
    A("v_pk_add_f32 v[16:17], v[16:17], v[24:25]")
    A("v_pk_add_f32 v[18:19], v[18:19], v[26:27]")
    tred4(16, (8, 4, 2))
    rne(16, 16)
    A("v_mul_f32 v16, v16, v40")
    rne(16, 16)
    A("v_add_f32 v16, v16, v118")
    A("v_cvt_pk_bf16_f32 v16, v16, v16")
    A("s_mov_b32 exec_lo, 0x30003")
    A("s_mov_b32 exec_hi, 0x30003")
    A(f"buffer_store_short v16, v117, s[48:51], 0 offen {outflag}")
    stamp(11)
    if probe is not None:
        A("s_waitcnt lgkmcnt(0)")
        A(f"s_sub_u32 s6, s{64+2*probe}, s64")
        A("s_min_u32 s6, s6, 10000")
        A("L_probe:")
        A("s_memrealtime s[96:97]")
        A("s_waitcnt lgkmcnt(0)")
        A("s_sub_u32 s7, s96, s86")
        A("s_cmp_lt_u32 s7, s6")
        A("s_cbranch_scc1 L_probe")
    A("s_cmp_eq_u32 s4, 0")
    A("s_cbranch_scc0 L_fin")
    A("s_mov_b64 exec, 1")
    A("v_mov_b32 v17, s56")
    A("buffer_store_dword v17, v127, s[12:15], 0 offen sc1")
    A("L_fin:")
    if stamps and probe is None:
        A("s_mov_b64 exec, 1")
        A("s_waitcnt lgkmcnt(0)")
        A("s_mul_i32 s6, s2, 12")
        A("s_add_u32 s6, s6, s3")
        A(f"s_mul_i32 s6, s6, {NST*8}")
        A(f"s_add_u32 s6, s6, {128<<20}")
        for i in range(NST):
            A(f"v_mov_b32 v4, s{64+2*i}"); A(f"v_mov_b32 v5, s{65+2*i}")
            A(f"buffer_store_dwordx2 v[4:5], v127, s[12:15], s6 offen offset:{8*i}")
            A("s_nop 1")
    A("L_bail:")
    A("L_end:")
    A("s_endpgm")
    A('.section .rodata,"a"'); A(".p2align 6")
    A(f".amdhsa_kernel {KN}_kernel")
    for d in ("next_free_vgpr 128", "next_free_sgpr 102", "accum_offset 128", "group_segment_fixed_size 0", "kernarg_size 104",
              "user_sgpr_count 2", "user_sgpr_kernarg_segment_ptr 1", "system_sgpr_workgroup_id_x 1"):
        L.append("  .amdhsa_" + d)
    A(".end_amdhsa_kernel")
    lines = []
    for x in L: lines.extend(x.split("\n"))
    if stamps:
        i = next(i for i, x in enumerate(lines) if "s_memrealtime s[64:65]" in x)
        lines[i+1:i+1] = [f"    s_mov_b64 s[{64+2*k}:{65+2*k}], 0" for k in range(1, NST)]
    return "\n".join(pad(lines)) + "\n"

if __name__ == "__main__":
    import argparse, ast
    out = sys.argv[1]
    kw = {}
    for a in sys.argv[2:]:
        k, v = a.split("=")
        try: v = ast.literal_eval(v)
        except Exception: pass
        kw[k] = v
    open(out, "w").write(gen(**kw))
```

```python
import sys, math, struct
from asmlib import pad
KN = "recurrent_scan__sliding_block_cached__mixer_channel_mlp__decode"

def f32(x): return "0x%08x" % struct.unpack("<I", struct.pack("<f", x))[0]

QP = 0x010000; HP = 0x030000; ML = 0x050000; ZP = 0x060000; OP = 0x100000; SP = 0x200000
PSTR = 8320
WS_USED = 0x400000
FL_L = 0; FL_A = 16; FL_M = 32; TAGW = 48
OA = 64
HL = 512; HSTR = 288
MX = 1280
QL = 2304; QSTR = 272
XN = 4608; XSTR = 2112
YN = XN + 2 * XSTR
PX = 13056
R0 = 17408; KB = R0 + 32768; VB = KB + 32768; W1B = VB + 32768
LDS_BYTES = W1B + 32768

def gen(stamps=False, W0=8, W1=6, nW0=8, trig_q=10, trig_o=30, trig_h=35, codepf=True, ntflag="nt",
        outflag="sc1", sleep=True, header=True, pollsleep=0, probe=None, cut=0, noswz=False, noflag=False, stag=True):
    if probe is not None: stamps = True
    L = []
    def A(s=""): L.append(("    " + s) if not s.endswith(":") and not s.startswith(".") else s)
    uid = [0]
    def lab(n): uid[0] += 1; return f"L_{n}_{uid[0]}"
    NST = 12
    def stamp(i):
        if stamps: A(f"s_memrealtime s[{64+2*i}:{65+2*i}]")
    def srd(d, size):
        A(f"s_mov_b32 s{d+2}, {size}"); A(f"s_mov_b32 s{d+3}, 0x20000")
    def wait_ge(fl, th, t=120):
        l = lab("w")
        A(f"{l}:")
        A(f"ds_read_b128 v[{t}:{t+3}], v127 offset:{fl}")
        A("s_sub_u32 s58, s58, 1")
        A("s_cbranch_scc1 L_bail")
        A("s_waitcnt lgkmcnt(0)")
        A(f"v_min3_u32 v{t}, v{t}, v{t+1}, v{t+2}")
        A(f"v_min_u32 v{t}, v{t}, v{t+3}")
        A(f"v_cmp_gt_u32 vcc, {th}, v{t}")
        A(f"s_cbranch_vccnz {l}")
    def set_flag(val):
        A(f"v_mov_b32 v125, {val}")
        A("s_mov_b64 exec, 1")
        A("ds_write_b32 v126, v125")
        A("s_mov_b64 exec, -1")
    def get_tag():
        A(f"ds_read_b32 v124, v127 offset:{TAGW}")
        A("s_waitcnt lgkmcnt(0)")
        A("v_readfirstlane_b32 s56, v124")
        A("v_mov_b32 v124, 0xffffff00")
        A("s_and_b32 s52, s56, 0xff")
        A("s_bfe_u32 s53, s56, 0x80008")
        A("s_bfe_u32 s54, s56, 0x80010")
        A("s_lshr_b32 s55, s56, 24")
    def tag4(d, s):
        for k in range(4): A(f"v_and_or_b32 v{d+k}, v{s+k}, v124, s{52+k}")
    def untag(regs, bad):
        for b in regs:
            for k in range(4): A(f"v_xor_b32 v{b+k}, s{52+k}, v{b+k}")
        first = True
        for b in regs:
            if first:
                A(f"v_or3_b32 v{bad}, v{b}, v{b+1}, v{b+2}"); A(f"v_or_b32 v{bad}, v{bad}, v{b+3}"); first = False
            else:
                A(f"v_or3_b32 v{bad}, v{bad}, v{b}, v{b+1}"); A(f"v_or3_b32 v{bad}, v{bad}, v{b+2}, v{b+3}")
        A(f"v_and_b32 v{bad}, 0xff, v{bad}")
    def allred(v, t, op, rors):
        for sw in ("32", "16"):
            A(f"v_mov_b32 v{t}, v{v}")
            A(f"v_permlane{sw}_swap_b32 v{v}, v{t}")
            A(f"{op} v{v}, v{v}, v{t}")
        for r in rors:
            A(f"{op}_dpp v{v}, v{v}, v{v} row_ror:{r} row_mask:0xf bank_mask:0xf")
    def tred4(a, rors):
        A(f"v_permlane32_swap_b32 v{a}, v{a+2}")
        A(f"v_permlane32_swap_b32 v{a+1}, v{a+3}")
        A(f"v_add_f32 v{a}, v{a}, v{a+2}")
        A(f"v_add_f32 v{a+1}, v{a+1}, v{a+3}")
        A(f"v_permlane16_swap_b32 v{a}, v{a+1}")
        A(f"v_add_f32 v{a}, v{a}, v{a+1}")
        for r in rors:
            A(f"v_add_f32_dpp v{a}, v{a}, v{a} row_ror:{r} row_mask:0xf bank_mask:0xf")
    def rne(d, s):
        A(f"v_cvt_pk_bf16_f32 v{d}, v{s}, v{s}"); A(f"v_and_b32 v{d}, 0xffff0000, v{d}")
    def poll_tail(l, bad):
        A(f"v_cmp_ne_u32 vcc, 0, v{bad}")
        A(f"s_cbranch_vccnz {l}")
    def poll_head(l):
        A(f"{l}:")
        A("s_sub_u32 s58, s58, 64")
        A("s_cbranch_scc1 L_bail")
    def gemv64(xb, rb, rs_sreg, need_m, need_l, st0):
        A("v_lshrrev_b32 v1, 2, v0")
        A("v_bfe_u32 v2, v0, 3, 2")
        A("v_xor_b32 v2, s5, v2")
        A("v_lshlrev_b32 v2, 5, v2")
        A("v_lshl_add_u32 v2, v1, 7, v2")
        A("v_and_b32 v3, 3, v0")
        A("v_lshl_add_u32 v2, v3, 3, v2")
        A(f"v_add_u32 v2, {rb}, v2")
        A("v_and_b32 v3, 1, v0")
        A(f"v_mul_u32_u24 v3, {XSTR}, v3")
        A("v_lshrrev_b32 v4, 4, v0")
        A("v_lshl_add_u32 v3, v4, 3, v3")
        A(f"s_lshl_b32 s6, s{rs_sreg}, 9")
        A(f"s_add_u32 s6, s6, {xb}")
        A("v_add_u32 v3, s6, v3")
        wait_ge(FL_M, need_m)
        stamp(st0)
        for kb in range(8):
            A(f"ds_read2_b64 v[{16+4*kb}:{19+4*kb}], v3 offset0:{kb*8} offset1:{kb*8+4}")
        get_tag()
        wait_ge(FL_L, need_l)
        stamp(st0 + 1)
        for kb in range(8):
            A(f"ds_read_b64_tr_b16 v[{48+4*kb}:{49+4*kb}], v2 offset:{kb*4096}")
            A(f"ds_read_b64_tr_b16 v[{50+4*kb}:{51+4*kb}], v2 offset:{kb*4096+2048}")
        for kb in range(8):
            A(f"s_waitcnt lgkmcnt({14-2*kb})")
            c = "0" if kb == 0 else "v[8:11]"
            A(f"v_mfma_f32_16x16x32_bf16 v[8:11], v[{48+4*kb}:{51+4*kb}], v[{16+4*kb}:{19+4*kb}], {c}")

    if header:
        L.append(open("cdna_kernels/%s.s.ref" % KN).read().split("; Override launch")[0].rstrip())
    L.append(f"; @launch grid=(256,1,1) block=(768,1,1) lds={LDS_BYTES}")
    A('.amdgcn_target "amdgcn-amd-amdhsa--gfx950"')
    A(".text")
    A(f".globl {KN}_kernel")
    A(".p2align 8")
    A(f".type {KN}_kernel,@function")
    A(f"{KN}_kernel:")
    stamp(0)
    A("s_load_dwordx2 s[8:9], s[0:1], 24")
    A("s_load_dwordx2 s[36:37], s[0:1], 0")
    A("s_load_dwordx2 s[12:13], s[0:1], 96")
    A("v_lshrrev_b32 v1, 6, v0")
    A("s_cmp_ge_u32 s2, 256")
    A("s_cbranch_scc1 L_end")
    A("v_readfirstlane_b32 s3, v1")
    A("v_and_b32 v0, 63, v0")
    A("s_and_b32 s4, s2, 7")
    A("s_lshl_b32 s4, s4, 5")
    A("s_lshr_b32 s6, s2, 3")
    A("s_or_b32 s4, s4, s6")
    A("s_and_b32 s5, s3, 3")
    A("s_cmp_ge_u32 s3, 4")
    A("s_cbranch_scc1 L_notL")
    A("v_lshrrev_b32 v1, 3, v0")
    A("v_and_b32 v2, 6, v1" if not noswz else "v_mov_b32 v2, 0")
    A("v_xor_b32 v2, v0, v2")
    A("v_and_b32 v2, 7, v2")
    A("v_lshlrev_b32 v2, 4, v2")
    A("v_lshl_add_u32 v3, v1, 13, v2")
    A("s_bfe_u32 s6, s4, 0x20004")
    A("s_lshl2_add_u32 s6, s6, s5")
    A("s_lshl_b32 s6, s6, 19")
    A("s_lshr_b32 s7, s4, 6")
    A("s_and_b32 s57, s4, 15")
    A("s_lshl4_add_u32 s7, s7, s57")
    A("s_lshl_b32 s7, s7, 7")
    A("s_add_u32 s6, s6, s7")
    A("s_lshl_b32 s59, s5, 13")
    A(f"s_add_u32 m0, s59, {R0}")
    srd(8, 8388608)
    A("s_waitcnt lgkmcnt(0)")
    cnt = [0]
    ticks = sorted(set([8, 16, 24, 32, 39, trig_q, trig_o, trig_h]))
    ticked = set()
    def Wn(n): return W0 if n < nW0 + W0 else W1
    def pre_issue():
        n = cnt[0]; w = Wn(n)
        if n >= w:
            A(f"s_waitcnt vmcnt({w-1})")
            landed = n - w + 1
            todo = [t for t in ticks if t <= landed and t not in ticked]
            if todo:
                set_flag(max(todo)); ticked.update(todo)
        cnt[0] += 1
    def late_setup():
        A("s_load_dwordx2 s[16:17], s[0:1], 8")
        A("s_load_dwordx2 s[20:21], s[0:1], 16")
        A("s_load_dwordx2 s[24:25], s[0:1], 48")
        A("s_load_dwordx2 s[28:29], s[0:1], 64")
        A("s_load_dwordx2 s[32:33], s[0:1], 32")
        srd(16, 67108864); srd(20, 67108864); srd(28, 7340032); srd(32, 8388608); srd(12, WS_USED if not stamps else 0x10000000)
        A("s_mov_b32 s27, 0x20000")
        A("s_and_b32 s7, s4, 31")
        A("s_cmp_lt_u32 s7, 28")
        A("s_cselect_b32 s26, 7340032, 0")
        A("s_mov_b32 s58, 0x100000")
        A("v_mov_b32 v127, 0")
        A("s_lshl_b32 s57, s5, 2")
        A(f"v_mov_b32 v126, s57")
        A("v_mul_u32_u24 v4, 7168, v1")
        A("v_add_u32 v4, v4, v2")
        A("v_lshrrev_b32 v1, 4, v0")
        A("v_lshlrev_b32 v2, 1, v1" if not noswz else "v_mov_b32 v2, 0")
        A("v_xor_b32 v2, v0, v2")
        A("v_and_b32 v2, 15, v2")
        A("v_lshlrev_b32 v2, 4, v2")
        A("v_lshl_add_u32 v5, v1, 8, v2")
        A("v_xor_b32 v6, 0x80, v5" if not noswz else "v_mov_b32 v6, v5")
        A("v_lshl_add_u32 v7, v1, 11, v2")
        A("s_and_b32 s57, s5, 1")
        A("s_lshl_b32 s57, s57, 7")
        A("v_xor_b32 v7, s57, v7")
        A("v_xor_b32 v8, 0x80, v7")
        A("v_and_b32 v2, 15, v0")
        A("v_lshlrev_b32 v9, 4, v2")
        A("v_lshl_add_u32 v9, v1, 14, v9")
        A("v_and_b32 v10, 1, v1")
        A("v_lshl_add_u32 v10, v2, 1, v10")
        A("v_lshlrev_b32 v10, 5, v10")
        A("v_lshrrev_b32 v11, 5, v0")
        A("v_lshl_add_u32 v10, v11, 4, v10")
        A("v_bfe_u32 v11, v0, 3, 1")
        A("v_lshlrev_b32 v11, 7, v11")
        A("v_lshl_add_u32 v11, v1, 5, v11")
        A("v_and_b32 v2, 1, v0")
        A("v_lshlrev_b32 v2, 4, v2")
        A("v_mov_b32 v1, 0xffff")
        A("v_lshlrev_b32 v1, v2, v1")
        A("v_bfe_u32 v2, v0, 1, 2")
        for r in range(4):
            A(f"v_cmp_eq_u32 vcc, {r}, v2")
            A(f"v_cndmask_b32 v{12+r}, 0, v1, vcc")
        A("s_bfe_u32 s60, s4, 0x10005")
        A("s_lshr_b32 s61, s4, 6")
        A("s_lshl2_add_u32 s6, s60, s61")
        A("s_lshl_b32 s6, s6, 8")
        A("s_add_u32 s6, s6, s7")
        A("s_add_u32 s6, s6, 224")
        A("s_lshl_b32 s6, s6, 15")
        A("s_add_u32 s62, s6, s59")
        A("s_mul_i32 s60, s60, 28")
        A("s_add_u32 s60, s60, s7")
        A("s_lshl_b32 s60, s60, 7")
        A("s_lshl2_add_u32 s61, s61, s5")
        A(f"s_mul_i32 s61, s61, {64*7168}")
        A("s_add_u32 s63, s60, s61")
        A("s_waitcnt lgkmcnt(0)")
        A("s_barrier")
    for i in range(8):
        if i == min(W0, 8): late_setup()
        pre_issue()
        if i == 4: A("s_add_u32 m0, m0, 4096")
        A(f"buffer_load_dwordx4 v3, s[8:11], s6 offen offset:{(i&3)*1024} {ntflag} lds") if i < min(W0, 8) else \
        A(f"buffer_load_dwordx4 v3, s[8:11], s96 offen offset:{(i&3)*1024} {ntflag} lds")
        if i < 7:
            inc = 65536 - 1024 if (i & 3) != 3 else 65536 + 3072
            if i + 1 < min(W0, 8): A(f"s_add_u32 s6, s6, {inc}")
            elif i + 1 == min(W0, 8): A(f"s_add_u32 s96, s6, {inc}")
            else: A(f"s_add_u32 s96, s96, {inc}")
    stamp(1)
    A("s_branch L_Lmain")
    A("L_notL:")
    srd(36, 4096)
    A("v_lshlrev_b32 v1, 4, v0")
    A("v_mov_b32 v127, 0")
    A("s_lshl_b32 s6, s5, 11")
    A("s_setprio 2")
    A("s_and_b32 s7, s3, 14")
    A("s_cmp_eq_u32 s7, 8")
    A("s_cbranch_scc0 L_nox")
    A("s_waitcnt lgkmcnt(0)")
    A("buffer_load_dwordx4 v[4:7], v1, s[36:39], s6 offen")
    A("buffer_load_dwordx4 v[8:11], v1, s[36:39], s6 offen offset:1024")
    A("s_load_dword s57, s[12:13], 0")
    A("L_nox:")
    A("v_lshlrev_b32 v2, 2, v0")
    A("s_cmp_eq_u32 s3, 4")
    A("s_cbranch_scc0 L_noz")
    A("s_mov_b64 exec, 0xfff")
    A("ds_write_b32 v2, v127")
    A("s_mov_b64 exec, -1")
    A("s_waitcnt lgkmcnt(0)")
    A("L_noz:")
    A("s_barrier")
    srd(12, WS_USED if not stamps else 0x10000000)
    A("s_mov_b32 s58, 0x100000")
    A("s_lshl_b32 s6, s3, 2")
    A("v_mov_b32 v126, s6")
    if cut == 1:
        A("s_waitcnt lgkmcnt(0)")
        A("s_branch L_fin")
    A("s_cmp_lt_u32 s3, 8")
    A("s_cbranch_scc1 L_A")
    A("s_cmp_lt_u32 s5, 2")
    A("s_cbranch_scc1 L_ln")
    set_flag(2)
    A("s_waitcnt lgkmcnt(0)")
    A("s_branch L_Mmain")
    A("L_ln:")
    A(f"s_mul_i32 s6, s5, {XSTR}")
    A(f"s_add_u32 s6, s6, {XN}")
    A("v_add_u32 v1, s6, v1")
    A("s_mov_b32 s60, 1")
    A("s_waitcnt lgkmcnt(0)")
    A("s_mul_i32 s57, s57, 1664525")
    A("s_add_u32 s57, s57, 1013904223")
    A("v_mov_b32 v2, s57")
    A(f"ds_write_b32 v127, v2 offset:{TAGW}")
    A("s_waitcnt vmcnt(0)")
    stamp(1)
    A("L_lnloop:")
    for k in range(8):
        A(f"v_lshlrev_b32 v{16+2*k}, 16, v{4+k}")
        A(f"v_and_b32 v{17+2*k}, 0xffff0000, v{4+k}")
    for k in range(4): A(f"v_pk_add_f32 v[{32+2*k}:{33+2*k}], v[{16+4*k}:{17+4*k}], v[{18+4*k}:{19+4*k}]")
    A("v_pk_add_f32 v[32:33], v[32:33], v[34:35]")
    A("v_pk_add_f32 v[36:37], v[36:37], v[38:39]")
    A("v_pk_add_f32 v[32:33], v[32:33], v[36:37]")
    A("v_add_f32 v12, v32, v33")
    allred(12, 13, "v_add_f32", (8, 4, 2, 1))
    A(f"v_mul_f32 v12, {f32(1/1024)}, v12")
    for k in range(8): A(f"v_pk_add_f32 v[{32+2*k}:{33+2*k}], v[{16+2*k}:{17+2*k}], v[12:13] op_sel_hi:[1,0] neg_lo:[0,1] neg_hi:[0,1]")
    A("v_pk_mul_f32 v[14:15], v[32:33], v[32:33]")
    A("v_pk_mul_f32 v[48:49], v[34:35], v[34:35]")
    for k in range(2, 8, 2):
        A(f"v_pk_fma_f32 v[14:15], v[{32+2*k}:{33+2*k}], v[{32+2*k}:{33+2*k}], v[14:15]")
        A(f"v_pk_fma_f32 v[48:49], v[{34+2*k}:{35+2*k}], v[{34+2*k}:{35+2*k}], v[48:49]")
    A("v_pk_add_f32 v[14:15], v[14:15], v[48:49]")
    A("v_add_f32 v14, v14, v15")
    rne(12, 12)
    for k in range(8): A(f"v_pk_add_f32 v[{32+2*k}:{33+2*k}], v[{16+2*k}:{17+2*k}], v[12:13] op_sel_hi:[1,0] neg_lo:[0,1] neg_hi:[0,1]")
    allred(14, 15, "v_add_f32", (8, 4, 2, 1))
    A(f"v_mul_f32 v14, {f32(1/1024)}, v14")
    rne(14, 14)
    A(f"v_add_f32 v14, {f32(1e-5)}, v14")
    rne(14, 14)
    A("v_sqrt_f32 v14, v14")
    for k in range(8): A(f"v_cvt_pk_bf16_f32 v{4+k}, v{32+2*k}, v{33+2*k}")
    rne(14, 14)
    A("v_rcp_f32 v14, v14")
    for k in range(8):
        A(f"v_lshlrev_b32 v{16+2*k}, 16, v{4+k}")
        A(f"v_and_b32 v{17+2*k}, 0xffff0000, v{4+k}")
    for k in range(8): A(f"v_pk_mul_f32 v[{16+2*k}:{17+2*k}], v[{16+2*k}:{17+2*k}], v[14:15] op_sel_hi:[1,0]")
    for k in range(8): A(f"v_cvt_pk_bf16_f32 v{4+k}, v{16+2*k}, v{17+2*k}")
    A("ds_write_b128 v1, v[4:7]")
    A("ds_write_b128 v1, v[8:11] offset:1024")
    set_flag("s60")
    A(f"v_add_u32 v1, {YN-XN}, v1")
    A("s_add_u32 s60, s60, 1")
    A("s_cmp_eq_u32 s60, 2")
    A("s_cbranch_scc1 L_lnloop")
    stamp(2)
    A("L_Mmain:")
    if cut in (2, 3): A("s_branch L_fin")
    A("s_load_dwordx2 s[40:41], s[0:1], 56")
    srd(40, 7168)
    A("s_lshr_b32 s61, s4, 6")
    A("s_lshr_b32 s62, s4, 3")
    A("v_and_b32 v90, 31, v0")
    A("v_min_u32 v90, 27, v90")
    A("s_mul_i32 s6, s62, 28")
    A("v_add_u32 v91, s6, v90")
    A("v_lshrrev_b32 v92, 5, v0")
    A("v_mul_u32_u24 v93, 14336, v92")
    A("v_lshl_add_u32 v93, v91, 4, v93")
    A("v_lshlrev_b32 v91, 3, v91")
    A(f"v_mul_u32_u24 v92, {HSTR}, v92")
    A("v_lshl_add_u32 v92, v90, 3, v92")
    A("s_waitcnt lgkmcnt(0)")
    A("s_cmp_eq_u32 s5, 0")
    A("s_cbranch_scc0 L_nob1")
    A("buffer_load_dwordx2 v[94:95], v91, s[40:43], 0 offen")
    A("L_nob1:")
    gemv64(YN, W1B, 61, 2, 32, 3)
    A("s_and_b32 s7, s4, 31")
    A("s_cmp_ge_u32 s7, 28")
    A("s_cbranch_scc1 L_nohp")
    A("s_bfe_u32 s6, s4, 0x10005")
    A("s_mul_i32 s6, s6, 28")
    A("s_add_u32 s6, s6, s7")
    A("s_lshl2_add_u32 s6, s6, s5")
    A("s_lshl_b32 s6, s6, 6")
    A(f"s_mul_i32 s7, s61, {2*14336}")
    A("s_add_u32 s6, s6, s7")
    A(f"s_add_u32 s6, s6, {HP}")
    A("v_and_b32 v1, 1, v0")
    A("v_mul_u32_u24 v1, 14336, v1")
    A("v_and_b32 v2, 48, v0")
    A("v_add_u32 v1, v1, v2")
    tag4(12, 8)
    A("s_mov_b32 exec_lo, 0x30003")
    A("s_mov_b32 exec_hi, 0x30003")
    A("buffer_store_dwordx4 v[12:15], v1, s[12:15], s6 offen sc1")
    A("s_mov_b64 exec, -1")
    A("L_nohp:")
    stamp(5)
    A("v_lshrrev_b32 v1, 2, v0")
    A("v_and_b32 v2, 7, v1")
    A("s_lshl_b32 s6, s5, 1")
    A("v_xor_b32 v2, s6, v2")
    A("v_lshlrev_b32 v2, 5, v2")
    A("v_lshl_add_u32 v2, v1, 8, v2")
    A("v_and_b32 v3, 3, v0")
    A("v_lshl_add_u32 v2, v3, 3, v2")
    A(f"v_add_u32 v2, {R0}, v2")
    A("v_xor_b32 v3, 32, v2")
    A("v_and_b32 v4, 1, v0")
    A(f"v_mul_u32_u24 v5, {HSTR}, v4")
    A("v_lshrrev_b32 v6, 4, v0")
    A("v_lshl_add_u32 v5, v6, 3, v5")
    A(f"v_add_u32 v5, {HL}, v5")
    A("v_bfe_u32 v7, v0, 1, 1")
    A("v_lshl_add_u32 v6, v7, 2, v6")
    A("v_lshlrev_b32 v6, 5, v6")
    A("v_lshl_add_u32 v6, v4, 4, v6")
    A("v_cmp_eq_u32 s[98:99], 1, v7")
    A(f"s_mul_i32 s6, s62, {PSTR}")
    A("s_and_b32 s7, s4, 7")
    A("s_lshl2_add_u32 s7, s7, s5")
    A("s_lshl_b32 s7, s7, 8")
    A("s_add_u32 s6, s6, s7")
    A(f"s_add_u32 s63, s6, {ZP}")
    A("s_cmp_eq_u32 s5, 0")
    A("s_cbranch_scc1 L_hgather")
    set_flag(3)
    A("s_branch L_hdone")
    A("L_hgather:")
    wait_ge(FL_L, trig_h)
    stamp(6)
    l = lab("hp"); poll_head(l)
    for rs in range(4):
        A(f"s_mov_b32 s6, {HP + rs*2*14336}")
        A(f"buffer_load_dwordx4 v[{96+4*rs}:{99+4*rs}], v93, s[12:15], s6 offen sc1")
    A("s_waitcnt vmcnt(0)")
    untag([96, 100, 104, 108], 112)
    poll_tail(l, 112)
    stamp(7)
    A("v_pk_add_f32 v[96:97], v[96:97], v[100:101]")
    A("v_pk_add_f32 v[98:99], v[98:99], v[102:103]")
    A("v_pk_add_f32 v[104:105], v[104:105], v[108:109]")
    A("v_pk_add_f32 v[106:107], v[106:107], v[110:111]")
    A("v_pk_add_f32 v[96:97], v[96:97], v[104:105]")
    A("v_pk_add_f32 v[98:99], v[98:99], v[106:107]")
    A("v_cvt_pk_bf16_f32 v100, v96, v97")
    A("v_cvt_pk_bf16_f32 v101, v98, v99")
    for k in range(2):
        A(f"v_lshlrev_b32 v{96+2*k}, 16, v{100+k}"); A(f"v_and_b32 v{97+2*k}, 0xffff0000, v{100+k}")
        A(f"v_lshlrev_b32 v{104+2*k}, 16, v{94+k}"); A(f"v_and_b32 v{105+2*k}, 0xffff0000, v{94+k}")
    A("v_pk_add_f32 v[96:97], v[96:97], v[104:105]")
    A("v_pk_add_f32 v[98:99], v[98:99], v[106:107]")
    A("v_cvt_pk_bf16_f32 v100, v96, v97")
    A("v_cvt_pk_bf16_f32 v101, v98, v99")
    for k in range(2):
        A(f"v_lshlrev_b32 v{96+2*k}, 16, v{100+k}"); A(f"v_and_b32 v{97+2*k}, 0xffff0000, v{100+k}")
    kk = -2.0 * math.sqrt(2.0 / math.pi) * math.log2(math.e)
    A(f"s_mov_b32 s6, {f32(kk*0.044715)}")
    A(f"v_mov_b32 v108, {f32(kk)}")
    for k in range(4): A(f"v_mul_f32 v{100+k}, v{96+k}, v{96+k}")
    for k in range(4): A(f"v_fma_f32 v{100+k}, v{100+k}, s6, v108")
    for k in range(4): A(f"v_mul_f32 v{100+k}, v{100+k}, v{96+k}")
    for k in range(4): A(f"v_exp_f32 v{100+k}, v{100+k}")
    for k in range(4): A(f"v_add_f32 v{100+k}, 1.0, v{100+k}")
    for k in range(4): A(f"v_rcp_f32 v{100+k}, v{100+k}")
    for k in range(4): A(f"v_mul_f32 v{96+k}, v{96+k}, v{100+k}")
    A("v_cvt_pk_bf16_f32 v100, v96, v97")
    A("v_cvt_pk_bf16_f32 v101, v98, v99")
    A(f"ds_write_b64 v92, v[100:101] offset:{HL}")
    set_flag(3)
    A("L_hdone:")
    wait_ge(FL_L, 39)
    stamp(8)
    for kk_ in range(7):
        A(f"ds_read_b64_tr_b16 v[{16+2*kk_}:{17+2*kk_}], v2 offset:{kk_*4096}")
        A(f"ds_read_b64_tr_b16 v[{32+2*kk_}:{33+2*kk_}], v3 offset:{kk_*4096}")
    wait_ge(FL_M, 3)
    stamp(9)
    for kb in range(3): A(f"ds_read2_b64 v[{48+4*kb}:{51+4*kb}], v5 offset0:{kb*8} offset1:{kb*8+4}")
    A("ds_read_b64 v[60:61], v5 offset:192")
    A("s_waitcnt lgkmcnt(0)")
    A("v_mfma_f32_16x16x16_bf16 v[8:11], v[28:29], v[60:61], 0")
    A("v_mfma_f32_16x16x16_bf16 v[12:15], v[44:45], v[60:61], 0")
    for kb in range(3):
        A(f"v_mfma_f32_16x16x32_bf16 v[8:11], v[{16+4*kb}:{19+4*kb}], v[{48+4*kb}:{51+4*kb}], v[8:11]")
        A(f"v_mfma_f32_16x16x32_bf16 v[12:15], v[{32+4*kb}:{35+4*kb}], v[{48+4*kb}:{51+4*kb}], v[12:15]")
    for k in range(4): A(f"v_cndmask_b32 v{8+k}, v{8+k}, v{12+k}, s[98:99]")
    tag4(8, 8)
    A("s_mov_b32 exec_lo, 0xf000f")
    A("s_mov_b32 exec_hi, 0xf000f")
    A("buffer_store_dwordx4 v[8:11], v6, s[12:15], s63 offen sc1")
    A("s_mov_b64 exec, -1")
    set_flag(4)
    stamp(10)
    A("s_branch L_fin")

    A("L_Lmain:")
    if W0 >= 8: late_setup()
    for name, rb, sr in (("k", KB, 16), ("v", VB, 20)):
        for i in range(8):
            pre_issue()
            if i == 0:
                if stag:
                    A("s_and_b32 s7, s4, 1"); A("s_lshl_b32 s7, s7, 12")
                    A("s_add_u32 s6, s62, s7"); A("s_add_u32 s7, s7, s59"); A(f"s_add_u32 m0, s7, {rb}"); so = "s6"
                else:
                    A(f"s_add_u32 m0, s59, {rb}"); so = "s62"
            if i == 4:
                if stag:
                    A("s_xor_b32 s6, s6, 4096"); A("s_xor_b32 s7, s7, 4096"); A(f"s_add_u32 m0, s7, {rb}")
                else:
                    A("s_add_u32 m0, m0, 4096"); A("s_add_u32 s6, s62, 4096"); so = "s6"
            A(f"buffer_load_dwordx4 v{5+(i&1)}, s[{sr}:{sr+3}], {so} offen offset:{(i&3)*1024} {ntflag} lds")
        stamp(2 if name == "k" else 3)
    for i in range(8):
        pre_issue()
        if i == 0: A(f"s_add_u32 m0, s59, {W1B}")
        if i == 4: A("s_add_u32 m0, m0, 4096")
        A(f"buffer_load_dwordx4 v4, s[24:27], s63 offen offset:{(i&3)*1024} {ntflag} lds")
        if i < 7: A(f"s_add_u32 s63, s63, {8*7168 - 1024 if (i & 3) != 3 else 8*7168 + 3072}")
    stamp(4)
    if not cut: wait_ge(FL_A, 1)
    A("s_lshr_b32 s6, s4, 3")
    A("s_lshl2_add_u32 s6, s6, s5")
    A(f"s_mul_i32 s6, s6, {28*2048}")
    A("s_and_b32 s7, s4, 7")
    A("s_lshl_b32 s7, s7, 8")
    A("s_add_u32 s6, s6, s7")
    A("s_mul_i32 s7, s5, 7168")
    for i in range(7):
        pre_issue()
        if i == 0: A(f"s_add_u32 m0, s7, {R0}")
        if i == 4: A("s_add_u32 m0, m0, 4096")
        A(f"buffer_load_dwordx4 v{7+(i&1)}, s[28:31], s6 offen offset:{(i&3)*1024} {ntflag} lds")
        if i < 6: A(f"s_add_u32 s6, s6, {8192 - 1024 if (i & 3) != 3 else 8192 + 3072}")
    stamp(5)
    A("s_lshr_b32 s60, s4, 1")
    A("s_and_b32 s7, s4, 1")
    A("s_lshl2_add_u32 s61, s7, s5")
    A("s_lshl_b32 s6, s60, 8")
    A("s_add_u32 s6, s6, s61")
    A("s_lshl_b32 s6, s6, 8")
    if stag:
        A("s_and_b32 s7, s60, 7"); A("s_lshl_b32 s7, s7, 11"); A("s_add_u32 s6, s6, s7")
    for t in range(8):
        pre_issue()
        A(f"buffer_load_dwordx4 v[{16+4*t}:{19+4*t}], v9, s[32:35], s6 offen {ntflag}")
        if t < 7: A(f"s_xor_b32 s6, s6, {(t ^ (t+1)) << 11}")
    for t in [t for t in ticks if t not in ticked]:
        A(f"s_waitcnt vmcnt({47-t})"); set_flag(t)
    stamp(6)
    A(f"s_mul_i32 s6, s60, {PSTR}")
    A("s_lshl_b32 s61, s61, 10")
    A("s_add_u32 s6, s6, s61")
    A(f"s_add_u32 s6, s6, {SP}")
    get_tag()
    if not cut: wait_ge(FL_A, 4)
    stamp(7)
    A(f"ds_read_b128 v[48:51], v11 offset:{OA}")
    A(f"ds_read_b128 v[52:55], v11 offset:{OA+16}")
    A("s_waitcnt lgkmcnt(0)")
    for t in range(8):
        for r in range(4): A(f"v_and_b32 v{56+4*t+r}, v{48+t}, v{12+r}")
    for t in range(8):
        A(f"s_waitcnt vmcnt({7-t})")
        c = "0" if t == 0 else "v[4:7]"
        A(f"v_mfma_f32_16x16x32_bf16 v[4:7], v[{56+4*t}:{59+4*t}], v[{16+4*t}:{19+4*t}], {c}")
    stamp(8)
    tag4(4, 4)
    A("buffer_store_dwordx4 v[4:7], v10, s[12:15], s6 offen sc1")
    set_flag(64)
    stamp(9)
    A("s_branch L_fin")

    A("L_A:")
    A("s_load_dwordx2 s[44:45], s[0:1], 72")
    A("s_load_dwordx2 s[48:49], s[0:1], 80")
    srd(44, 2048); srd(48, 4096)
    A("s_lshr_b32 s61, s4, 6")
    A("s_bfe_u32 s60, s4, 0x10005")
    A("s_bfe_u32 s62, s4, 0x20004")
    A("v_lshrrev_b32 v1, 4, v0")
    A("s_lshl_b32 s6, s4, 2")
    A("v_add_lshl_u32 v116, v1, s6, 1")
    A("v_and_b32 v2, 1, v0")
    A("v_lshl_add_u32 v117, v2, 11, v116")
    A("s_waitcnt lgkmcnt(0)")
    A("s_cmp_eq_u32 s5, 3")
    A("s_cbranch_scc0 L_nofin0")
    A("buffer_load_ushort v118, v117, s[36:39], 0 offen")
    A("buffer_load_ushort v119, v116, s[44:47], 0 offen")
    A("buffer_load_ushort v115, v117, s[48:51], 0 offen")
    A("v_mul_u32_u24 v2, 0x3f0000, v2")
    A("buffer_load_dword v114, v2, s[12:15], 0 offen offset:128")
    A("L_nofin0:")
    if codepf:
        A("s_and_b32 s6, s4, 31")
        A("s_lshl2_add_u32 s6, s6, s5")
        A(f"s_cmp_eq_u32 s6, {28*4+2}")
        A("s_cbranch_scc0 L_nopf")
        A("s_getpc_b64 s[6:7]")
        A("L_pc:")
        A(f"s_sub_u32 s6, s6, L_pc-{KN}_kernel")
        A("s_subb_u32 s7, s7, 0")
        A(f"v_add_u32 v1, ((L_end-{KN}_kernel)>>7)-63, v0")
        A("v_max_i32 v1, 0, v1")
        A("v_lshlrev_b32 v1, 7, v1")
        A("v_mov_b32 v3, s7")
        A("v_add_co_u32 v2, vcc, s6, v1")
        A("v_addc_co_u32 v3, vcc, 0, v3, vcc")
        A("global_load_dword v113, v[2:3], off")
        A("L_nopf:")
    gemv64(XN, R0, 62, 1, 8, 1)
    set_flag(1)
    if cut == 2: A("s_branch L_fin")
    A("s_lshl3_add_u32 s6, s61, s62")
    A("s_lshl_b32 s6, s6, 12")
    A("s_and_b32 s7, s4, 15")
    A("s_lshl2_add_u32 s7, s7, s5")
    A("s_lshl_b32 s7, s7, 6")
    A("s_add_u32 s6, s6, s7")
    A(f"s_add_u32 s6, s6, {QP}")
    A("v_and_b32 v1, 1, v0")
    A("v_lshlrev_b32 v1, 14, v1")
    A("v_and_b32 v2, 48, v0")
    A("v_add_u32 v1, v1, v2")
    tag4(12, 8)
    A("s_mov_b32 exec_lo, 0x30003")
    A("s_mov_b32 exec_hi, 0x30003")
    A("buffer_store_dwordx4 v[12:15], v1, s[12:15], s6 offen sc1")
    A("s_mov_b64 exec, -1")
    stamp(3)
    if cut == 3: A("s_branch L_fin")
    A("v_lshlrev_b32 v1, 4, v0")
    A("s_lshl1_add_u32 s6, s61, s60")
    A("s_lshl4_add_u32 s6, s6, s5")
    A("s_lshl_b32 s6, s6, 10")
    A(f"s_add_u32 s6, s6, {QP}")
    A("v_add_u32 v2, s6, v1")
    A("v_lshrrev_b32 v3, 5, v0")
    A("s_lshl_b32 s6, s5, 1")
    A("v_add_u32 v3, s6, v3")
    A(f"v_mul_u32_u24 v3, {QSTR}, v3")
    A("v_and_b32 v4, 31, v0")
    A("v_lshl_add_u32 v3, v4, 3, v3")
    A("v_and_b32 v4, 7, v0")
    A("v_lshrrev_b32 v5, 4, v0")
    A(f"v_mul_u32_u24 v6, {QSTR}, v4")
    A("v_lshl_add_u32 v6, v5, 4, v6")
    A("v_lshlrev_b32 v7, 1, v4")
    A("v_xor_b32 v7, v7, v5")
    A("v_lshlrev_b32 v7, 4, v7")
    A("v_and_b32 v8, 15, v0")
    A("v_lshl_add_u32 v7, v8, 8, v7")
    A("s_lshl_b32 s6, s5, 13")
    A(f"s_add_u32 s6, s6, {KB}")
    A("v_add_u32 v8, s6, v7")
    A("v_xor_b32 v9, 64, v8")
    A("v_xor_b32 v10, 0x80, v8")
    A("v_xor_b32 v11, 0xc0, v8")
    A("v_lshlrev_b32 v12, 15, v4")
    A("v_and_b32 v13, 8, v0")
    A("v_lshl_add_u32 v12, v13, 3, v12")
    A("v_lshl_add_u32 v12, v5, 4, v12")
    A("v_cmp_eq_u32 s[98:99], 8, v13")
    A("v_lshlrev_b32 v13, 10, v4")
    A("v_lshrrev_b32 v14, 2, v0")
    A("v_and_b32 v15, 7, v14")
    A("s_lshl_b32 s6, s5, 1")
    A("v_xor_b32 v15, s6, v15")
    A("v_lshlrev_b32 v15, 5, v15")
    A("v_lshl_add_u32 v14, v14, 8, v15")
    A("v_and_b32 v15, 3, v0")
    A("v_lshl_add_u32 v14, v15, 3, v14")
    A(f"v_add_u32 v14, {VB}, v14")
    A("v_xor_b32 v15, 32, v14")
    A("s_mov_b32 s96, 4096"); A("s_mov_b32 s97, 8192"); A("s_mov_b32 s57, 12288")
    def qloads():
        for rs, so in enumerate(("0", "s96", "s97", "s57")):
            A(f"buffer_load_dwordx4 v[{16+4*rs}:{19+4*rs}], v2, s[12:15], {so} offen sc1")
    wait_ge(FL_L, trig_q)
    stamp(4)
    qloads()
    wait_ge(FL_L, 16)
    for T in range(2):
        for t in range(4): A(f"ds_read_b128 v[{48+16*T+4*t}:{51+16*T+4*t}], v{8+t} offset:{T*4096}")
    A("s_branch L_qchk")
    l = lab("qp"); poll_head(l)
    qloads()
    A("L_qchk:")
    A("s_waitcnt vmcnt(0)")
    untag([16, 20, 24, 28], 32)
    poll_tail(l, 32)
    stamp(5)
    A("v_pk_add_f32 v[16:17], v[16:17], v[20:21]")
    A("v_pk_add_f32 v[18:19], v[18:19], v[22:23]")
    A("v_pk_add_f32 v[24:25], v[24:25], v[28:29]")
    A("v_pk_add_f32 v[26:27], v[26:27], v[30:31]")
    A("v_pk_add_f32 v[16:17], v[16:17], v[24:25]")
    A("v_pk_add_f32 v[18:19], v[18:19], v[26:27]")
    A("v_cvt_pk_bf16_f32 v16, v16, v17")
    A("v_cvt_pk_bf16_f32 v17, v18, v19")
    A(f"ds_write_b64 v3, v[16:17] offset:{QL}")
    set_flag(2)
    wait_ge(FL_A, 2)
    for t in range(4): A(f"ds_read_b128 v[{16+4*t}:{19+4*t}], v6 offset:{QL+t*64}")
    A(f"s_mov_b32 s6, {f32(math.log2(math.e) / math.sqrt(128.0))}")
    for t in range(4):
        A(f"s_waitcnt lgkmcnt({3-t})")
        for T in range(2):
            c = "0" if t == 0 else f"v[{32+4*T}:{35+4*T}]"
            A(f"v_mfma_f32_16x16x32_bf16 v[{32+4*T}:{35+4*T}], v[{48+16*T+4*t}:{51+16*T+4*t}], v[{16+4*t}:{19+4*t}], {c}")
    A("s_lshl_b32 s7, s5, 10")
    A("v_add_u32 v2, s7, v1")
    A("s_lshl_b32 s7, s5, 2")
    A("v_add_u32 v3, s7, v1")
    for k in range(4): A(f"v_mov_b32 v{44+k}, 0x3f803f80")
    A("v_max3_f32 v40, v32, v33, v34")
    A("v_max3_f32 v41, v35, v36, v37")
    A("v_max3_f32 v40, v40, v38, v39")
    A("v_max_f32 v40, v40, v41")
    allred(40, 41, "v_max_f32", ())
    A("v_mul_f32 v40, s6, v40")
    for k in range(8): A(f"v_fma_f32 v{32+k}, v{32+k}, s6, -v40")
    for k in range(8): A(f"v_exp_f32 v{32+k}, v{32+k}")
    for k in range(4): A(f"v_cvt_pk_bf16_f32 v{32+k}, v{32+2*k}, v{33+2*k}")
    A(f"ds_write_b32 v3, v40 offset:{MX}")
    A(f"ds_write_b128 v2, v[32:35] offset:{PX}")
    set_flag(3)
    wait_ge(FL_A, 3)
    stamp(6)
    A(f"ds_read_b128 v[40:43], v1 offset:{MX}")
    for w in range(4): A(f"ds_read_b128 v[{16+4*w}:{19+4*w}], v1 offset:{PX+w*1024}")
    A("s_waitcnt lgkmcnt(4)")
    A("v_max3_f32 v36, v40, v41, v42")
    A("v_max_f32 v36, v36, v43")
    for w in range(4): A(f"v_sub_f32 v{40+w}, v{40+w}, v36")
    for w in range(4): A(f"v_exp_f32 v{40+w}, v{40+w}")
    A("s_waitcnt lgkmcnt(0)")
    for w in range(4): A(f"v_mfma_f32_16x16x32_bf16 v[{48+4*w}:{51+4*w}], v[44:47], v[{16+4*w}:{19+4*w}], 0")
    A("s_cmp_lt_u32 s5, 2")
    A("s_cbranch_scc1 L_noflag4")
    set_flag(4)
    A("L_noflag4:")
    A("s_and_b32 s7, s4, 63")
    A("s_cmp_eq_u32 s5, 2")
    A("s_cbranch_scc0 L_noml")
    A("s_nop 4")
    A("v_mul_f32 v37, v40, v48")
    for w in range(1, 4): A(f"v_fmac_f32 v37, v{40+w}, v{48+4*w}")
    A("v_mov_b32 v38, s56")
    A("v_mov_b32 v39, s56")
    A("s_lshl_b32 s6, s61, 9")
    A("s_add_u32 s6, s6, s7")
    A("s_lshl_b32 s6, s6, 4")
    A(f"s_add_u32 s6, s6, {ML}")
    A("s_mov_b64 exec, 0xff")
    A("buffer_store_dwordx4 v[36:39], v13, s[12:15], s6 offen sc1")
    A("s_mov_b64 exec, -1")
    A("L_noml:")
    A("s_lshl_b32 s6, s61, 5")
    A("s_add_u32 s6, s6, s5")
    A("s_lshl_b32 s6, s6, 6")
    A("s_add_u32 s6, s6, s7")
    A("s_lshl_b32 s6, s6, 7")
    A(f"s_add_u32 s6, s6, {OP}")
    wait_ge(FL_L, 24)
    stamp(7)
    for kb in range(4):
        for dt in range(2):
            for hh in range(2):
                r = 48 + 8*kb + 4*dt + 2*hh
                A(f"ds_read_b64_tr_b16 v[{r}:{r+1}], v{14+dt} offset:{kb*8192+hh*4096}")
    for kb in range(4):
        for dt in range(2):
            A(f"s_waitcnt lgkmcnt({14-4*kb-2*dt})")
            r = 48 + 8*kb + 4*dt; d = 80 + 8*kb + 4*dt
            A(f"v_mfma_f32_16x16x32_bf16 v[{d}:{d+3}], v[{r}:{r+3}], v[{16+4*kb}:{19+4*kb}], 0")
    for kb in range(4):
        for k in range(4): A(f"v_cndmask_b32 v{80+8*kb+k}, v{80+8*kb+k}, v{84+8*kb+k}, s[98:99]")
        for k in range(4):
            if kb == 0: A(f"v_mul_f32 v{32+k}, v40, v{80+k}")
            else: A(f"v_fmac_f32 v{32+k}, v{40+kb}, v{80+8*kb+k}")
    tag4(32, 32)
    A("buffer_store_dwordx4 v[32:35], v12, s[12:15], s6 offen sc1")
    stamp(8)
    A("s_cmp_eq_u32 s5, 2")
    A("s_cbranch_scc1 L_fin")
    A("s_cmp_eq_u32 s5, 3")
    A("s_cbranch_scc1 L_final")
    A("s_and_b32 s6, s4, 0xfe")
    A("s_add_u32 s6, s6, s5")
    A("s_lshl_b32 s6, s6, 12")
    A(f"s_add_u32 s96, s6, {OP}")
    A("s_lshr_b32 s6, s4, 3")
    A("s_lshl1_add_u32 s6, s6, s5")
    A("s_lshl_b32 s6, s6, 9")
    A(f"s_add_u32 s97, s6, {ML}")
    A("v_lshrrev_b32 v2, 3, v0")
    A("v_lshlrev_b32 v2, 4, v2")
    A("v_lshl_add_u32 v3, v4, 2, v5")
    if stag:
        A("s_bfe_u32 s6, s4, 0x30001")
        A("v_xor_b32 v3, s6, v3")
    A("v_lshlrev_b32 v3, 2, v3")
    A("s_lshl_b32 s6, s5, 7")
    A("v_add_u32 v3, s6, v3")
    wait_ge(FL_L, trig_o)
    stamp(9)
    l = lab("op"); poll_head(l)
    for i in range(4): A(f"buffer_load_dwordx4 v[{48+4*i}:{51+4*i}], v2, s[12:15], s97 offen offset:{i*128} sc1")
    for i in range(4): A(f"buffer_load_dwordx4 v[{16+4*i}:{19+4*i}], v1, s[12:15], s96 offen offset:{i*1024} sc1")
    A("s_waitcnt vmcnt(4)")
    for i in range(4): A(f"v_xor_b32 v{50+4*i}, s56, v{50+4*i}")
    A("v_max3_f32 v36, v48, v52, v56")
    A("v_or3_b32 v33, v50, v54, v58")
    A("v_max_f32 v36, v36, v60")
    allred(36, 37, "v_max_f32", (8,))
    for i in range(4): A(f"v_sub_f32 v{40+i}, v{48+4*i}, v36")
    for i in range(4): A(f"v_exp_f32 v{40+i}, v{40+i}")
    A("v_mul_f32 v36, v40, v49")
    for i in range(1, 4): A(f"v_fmac_f32 v36, v{40+i}, v{49+4*i}")
    allred(36, 37, "v_add_f32", (8,))
    A("v_rcp_f32 v36, v36")
    A("s_waitcnt vmcnt(0)")
    untag([16, 20, 24, 28], 32)
    A("v_or3_b32 v32, v32, v33, v62")
    poll_tail(l, 32)
    stamp(10)
    for k in range(4): A(f"v_mul_f32 v{16+k}, v40, v{16+k}")
    for i in range(1, 4):
        for k in range(4): A(f"v_fmac_f32 v{16+k}, v{40+i}, v{16+4*i+k}")
    tred4(16, (8,))
    A("v_mul_f32 v16, v16, v36")
    A("v_cvt_pk_bf16_f32 v16, v16, v16")
    A(f"ds_write_b32 v3, v16 offset:{OA}")
    set_flag(4)
    stamp(11)
    A("s_branch L_fin")
    A("L_final:")
    A("v_lshrrev_b32 v2, 1, v0")
    A(f"v_mul_u32_u24 v2, {PSTR}, v2")
    A("v_and_b32 v3, 1, v0")
    A("v_lshl_add_u32 v2, v3, 4, v2")
    A("s_lshl_b32 s6, s4, 5")
    A("v_add_u32 v2, s6, v2")
    A(f"s_mov_b32 s6, {ZP}")
    A(f"s_mov_b32 s60, {SP}"); A(f"s_mov_b32 s61, {SP+32*PSTR}"); A(f"s_mov_b32 s62, {SP+64*PSTR}"); A(f"s_mov_b32 s63, {SP+96*PSTR}")
    A("v_lshlrev_b32 v118, 16, v118")
    A("v_lshlrev_b32 v119, 16, v119")
    wait_ge(FL_M, 4)
    l = lab("zp"); poll_head(l)
    A("buffer_load_dwordx4 v[16:19], v2, s[12:15], s6 offen sc1")
    A("s_waitcnt vmcnt(0)")
    untag([16], 32)
    poll_tail(l, 32)
    stamp(9)
    tred4(16, (8, 4, 2))
    rne(16, 16)
    A("v_add_f32 v16, v16, v119")
    rne(16, 16)
    A(f"v_mul_f32 v17, {f32(-math.log2(math.e))}, v16")
    A("v_exp_f32 v17, v17")
    A("v_add_f32 v17, 1.0, v17")
    A("v_rcp_f32 v17, v17")
    A("v_mul_f32 v40, v16, v17")
    rne(40, 40)
    wait_ge(FL_L, 64)
    stamp(10)
    l = lab("sp"); poll_head(l)
    for i in range(4): A(f"buffer_load_dwordx4 v[{16+4*i}:{19+4*i}], v2, s[12:15], s{60+i} offen sc1")
    A("s_waitcnt vmcnt(0)")
    untag([16, 20, 24, 28], 32)
    poll_tail(l, 32)
    A("v_pk_add_f32 v[16:17], v[16:17], v[20:21]")
    A("v_pk_add_f32 v[18:19], v[18:19], v[22:23]")
    A("v_pk_add_f32 v[24:25], v[24:25], v[28:29]")
    A("v_pk_add_f32 v[26:27], v[26:27], v[30:31]")
    A("v_pk_add_f32 v[16:17], v[16:17], v[24:25]")
    A("v_pk_add_f32 v[18:19], v[18:19], v[26:27]")
    tred4(16, (8, 4, 2))
    rne(16, 16)
    A("v_mul_f32 v16, v16, v40")
    rne(16, 16)
    A("v_add_f32 v16, v16, v118")
    A("v_cvt_pk_bf16_f32 v16, v16, v16")
    A("s_mov_b32 exec_lo, 0x30003")
    A("s_mov_b32 exec_hi, 0x30003")
    A(f"buffer_store_short v16, v117, s[48:51], 0 offen {outflag}")
    stamp(11)
    if probe is not None:
        A("s_waitcnt lgkmcnt(0)")
        A(f"s_sub_u32 s6, s{64+2*probe}, s64")
        A("s_min_u32 s6, s6, 10000")
        A("L_probe:")
        A("s_memrealtime s[96:97]")
        A("s_waitcnt lgkmcnt(0)")
        A("s_sub_u32 s7, s96, s86")
        A("s_cmp_lt_u32 s7, s6")
        A("s_cbranch_scc1 L_probe")
    A("s_cmp_eq_u32 s4, 0")
    A("s_cbranch_scc0 L_fin")
    A("s_mov_b64 exec, 1")
    A("v_mov_b32 v17, s56")
    A("buffer_store_dword v17, v127, s[12:15], 0 offen sc1")
    A("L_fin:")
    if stamps and probe is None:
        A("s_mov_b64 exec, 1")
        A("s_waitcnt vmcnt(0) lgkmcnt(0)")
        A("s_mul_i32 s6, s2, 12")
        A("s_add_u32 s6, s6, s3")
        A(f"s_mul_i32 s6, s6, {NST*8}")
        A(f"s_add_u32 s6, s6, {128<<20}")
        for i in range(NST):
            A(f"v_mov_b32 v4, s{64+2*i}"); A(f"v_mov_b32 v5, s{65+2*i}")
            A(f"buffer_store_dwordx2 v[4:5], v127, s[12:15], s6 offen offset:{8*i}")
            A("s_nop 1")
    A("L_bail:")
    A("L_end:")
    A("s_endpgm")
    A('.section .rodata,"a"'); A(".p2align 6")
    A(f".amdhsa_kernel {KN}_kernel")
    for d in ("next_free_vgpr 128", "next_free_sgpr 102", "accum_offset 128", "group_segment_fixed_size 0", "kernarg_size 104",
              "user_sgpr_count 2", "user_sgpr_kernarg_segment_ptr 1", "system_sgpr_workgroup_id_x 1"):
        L.append("  .amdhsa_" + d)
    A(".end_amdhsa_kernel")
    lines = []
    for x in L: lines.extend(x.split("\n"))
    if stamps:
        i = next(i for i, x in enumerate(lines) if "s_memrealtime s[64:65]" in x)
        lines[i+1:i+1] = [f"    s_mov_b64 s[{64+2*k}:{65+2*k}], 0" for k in range(1, NST)]
    return "\n".join(pad(lines)) + "\n"

if __name__ == "__main__":
    import argparse, ast
    out = sys.argv[1]
    kw = {}
    for a in sys.argv[2:]:
        k, v = a.split("=")
        try: v = ast.literal_eval(v)
        except Exception: pass
        kw[k] = v
    open(out, "w").write(gen(**kw))
```

```python
import sys, math, struct
from asmlib import pad
KN = "recurrent_scan__sliding_block_cached__mixer_channel_mlp__decode"

def f32(x): return "0x%08x" % struct.unpack("<I", struct.pack("<f", x))[0]

QP = 0x010000; HP = 0x030000; ML = 0x050000; ZP = 0x060000; OP = 0x100000; SP = 0x200000
PSTR = 8320
WS_USED = 0x400000
FL_L = 0; FL_A = 16; FL_M = 32; TAGW = 48
OA = 64
HL = 512; HSTR = 288
MX = 1280
QL = 2304; QSTR = 272
XN = 4608; XSTR = 2112
YN = XN + 2 * XSTR
PX = 13056
R0 = 17408; KB = R0 + 32768; VB = KB + 32768; W1B = VB + 32768
LDS_BYTES = W1B + 32768

def gen(stamps=False, W0=8, W1=6, nW0=8, trig_q=10, trig_o=30, trig_h=35, codepf=True, ntflag="nt",
        outflag="sc1", sleep=True, header=True, pollsleep=0, probe=None, cut=0, noswz=False, noflag=False, stag=True, prole='A', pwg=None, pmul=1):
    if probe is not None: stamps = True
    L = []
    def A(s=""): L.append(("    " + s) if not s.endswith(":") and not s.startswith(".") else s)
    uid = [0]
    def lab(n): uid[0] += 1; return f"L_{n}_{uid[0]}"
    NST = 12
    def stamp(i):
        if stamps: A(f"s_memrealtime s[{64+2*i}:{65+2*i}]")
    def srd(d, size):
        A(f"s_mov_b32 s{d+2}, {size}"); A(f"s_mov_b32 s{d+3}, 0x20000")
    def wait_ge(fl, th, t=120):
        l = lab("w")
        A(f"{l}:")
        A(f"ds_read_b128 v[{t}:{t+3}], v127 offset:{fl}")
        A("s_sub_u32 s58, s58, 1")
        A("s_cbranch_scc1 L_bail")
        A("s_waitcnt lgkmcnt(0)")
        A(f"v_min3_u32 v{t}, v{t}, v{t+1}, v{t+2}")
        A(f"v_min_u32 v{t}, v{t}, v{t+3}")
        A(f"v_cmp_gt_u32 vcc, {th}, v{t}")
        A(f"s_cbranch_vccnz {l}")
    def set_flag(val):
        A(f"v_mov_b32 v125, {val}")
        A("s_mov_b64 exec, 1")
        A("ds_write_b32 v126, v125")
        A("s_mov_b64 exec, -1")
    def get_tag():
        A(f"ds_read_b32 v124, v127 offset:{TAGW}")
        A("s_waitcnt lgkmcnt(0)")
        A("v_readfirstlane_b32 s56, v124")
        A("v_mov_b32 v124, 0xffffff00")
        A("s_and_b32 s52, s56, 0xff")
        A("s_bfe_u32 s53, s56, 0x80008")
        A("s_bfe_u32 s54, s56, 0x80010")
        A("s_lshr_b32 s55, s56, 24")
    def tag4(d, s):
        for k in range(4): A(f"v_and_or_b32 v{d+k}, v{s+k}, v124, s{52+k}")
    def untag(regs, bad):
        for b in regs:
            for k in range(4): A(f"v_xor_b32 v{b+k}, s{52+k}, v{b+k}")
        first = True
        for b in regs:
            if first:
                A(f"v_or3_b32 v{bad}, v{b}, v{b+1}, v{b+2}"); A(f"v_or_b32 v{bad}, v{bad}, v{b+3}"); first = False
            else:
                A(f"v_or3_b32 v{bad}, v{bad}, v{b}, v{b+1}"); A(f"v_or3_b32 v{bad}, v{bad}, v{b+2}, v{b+3}")
        A(f"v_and_b32 v{bad}, 0xff, v{bad}")
    def allred(v, t, op, rors):
        for sw in ("32", "16"):
            A(f"v_mov_b32 v{t}, v{v}")
            A(f"v_permlane{sw}_swap_b32 v{v}, v{t}")
            A(f"{op} v{v}, v{v}, v{t}")
        for r in rors:
            A(f"{op}_dpp v{v}, v{v}, v{v} row_ror:{r} row_mask:0xf bank_mask:0xf")
    def tred4(a, rors):
        A(f"v_permlane32_swap_b32 v{a}, v{a+2}")
        A(f"v_permlane32_swap_b32 v{a+1}, v{a+3}")
        A(f"v_add_f32 v{a}, v{a}, v{a+2}")
        A(f"v_add_f32 v{a+1}, v{a+1}, v{a+3}")
        A(f"v_permlane16_swap_b32 v{a}, v{a+1}")
        A(f"v_add_f32 v{a}, v{a}, v{a+1}")
        for r in rors:
            A(f"v_add_f32_dpp v{a}, v{a}, v{a} row_ror:{r} row_mask:0xf bank_mask:0xf")
    def rne(d, s):
        A(f"v_cvt_pk_bf16_f32 v{d}, v{s}, v{s}"); A(f"v_and_b32 v{d}, 0xffff0000, v{d}")
    def poll_tail(l, bad):
        A(f"v_cmp_ne_u32 vcc, 0, v{bad}")
        A(f"s_cbranch_vccnz {l}")
    def poll_head(l):
        A(f"{l}:")
        A("s_sub_u32 s58, s58, 64")
        A("s_cbranch_scc1 L_bail")
    def pwrite():
        l = lab("pw")
        A("s_waitcnt lgkmcnt(0)")
        A("s_cmp_eq_u32 s5, 0")
        A(f"s_cbranch_scc0 {l}")
        A(f"s_sub_u32 s7, s{64+2*probe}, s64")
        A("v_mov_b32 v123, s7")
        A("ds_write_b32 v127, v123 offset:52")
        A(f"{l}:")
    def gemv64(xb, rb, rs_sreg, need_m, need_l, st0):
        A("v_lshrrev_b32 v1, 2, v0")
        A("v_bfe_u32 v2, v0, 3, 2")
        A("v_xor_b32 v2, s5, v2")
        A("v_lshlrev_b32 v2, 5, v2")
        A("v_lshl_add_u32 v2, v1, 7, v2")
        A("v_and_b32 v3, 3, v0")
        A("v_lshl_add_u32 v2, v3, 3, v2")
        A(f"v_add_u32 v2, {rb}, v2")
        A("v_and_b32 v3, 1, v0")
        A(f"v_mul_u32_u24 v3, {XSTR}, v3")
        A("v_lshrrev_b32 v4, 4, v0")
        A("v_lshl_add_u32 v3, v4, 3, v3")
        A(f"s_lshl_b32 s6, s{rs_sreg}, 9")
        A(f"s_add_u32 s6, s6, {xb}")
        A("v_add_u32 v3, s6, v3")
        wait_ge(FL_M, need_m)
        stamp(st0)
        for kb in range(8):
            A(f"ds_read2_b64 v[{16+4*kb}:{19+4*kb}], v3 offset0:{kb*8} offset1:{kb*8+4}")
        get_tag()
        wait_ge(FL_L, need_l)
        stamp(st0 + 1)
        for kb in range(8):
            A(f"ds_read_b64_tr_b16 v[{48+4*kb}:{49+4*kb}], v2 offset:{kb*4096}")
            A(f"ds_read_b64_tr_b16 v[{50+4*kb}:{51+4*kb}], v2 offset:{kb*4096+2048}")
        for kb in range(8):
            A(f"s_waitcnt lgkmcnt({14-2*kb})")
            c = "0" if kb == 0 else "v[8:11]"
            A(f"v_mfma_f32_16x16x32_bf16 v[8:11], v[{48+4*kb}:{51+4*kb}], v[{16+4*kb}:{19+4*kb}], {c}")

    if header:
        L.append(open("cdna_kernels/%s.s.ref" % KN).read().split("; Override launch")[0].rstrip())
    L.append(f"; @launch grid=(256,1,1) block=(768,1,1) lds={LDS_BYTES}")
    A('.amdgcn_target "amdgcn-amd-amdhsa--gfx950"')
    A(".text")
    A(f".globl {KN}_kernel")
    A(".p2align 8")
    A(f".type {KN}_kernel,@function")
    A(f"{KN}_kernel:")
    stamp(0)
    A("s_load_dwordx2 s[8:9], s[0:1], 24")
    A("s_load_dwordx2 s[36:37], s[0:1], 0")
    A("s_load_dwordx2 s[12:13], s[0:1], 96")
    A("v_lshrrev_b32 v1, 6, v0")
    A("s_cmp_ge_u32 s2, 256")
    A("s_cbranch_scc1 L_end")
    A("v_readfirstlane_b32 s3, v1")
    A("v_and_b32 v0, 63, v0")
    A("s_and_b32 s4, s2, 7")
    A("s_lshl_b32 s4, s4, 5")
    A("s_lshr_b32 s6, s2, 3")
    A("s_or_b32 s4, s4, s6")
    A("s_and_b32 s5, s3, 3")
    A("s_cmp_ge_u32 s3, 4")
    A("s_cbranch_scc1 L_notL")
    A("v_lshrrev_b32 v1, 3, v0")
    A("v_and_b32 v2, 6, v1" if not noswz else "v_mov_b32 v2, 0")
    A("v_xor_b32 v2, v0, v2")
    A("v_and_b32 v2, 7, v2")
    A("v_lshlrev_b32 v2, 4, v2")
    A("v_lshl_add_u32 v3, v1, 13, v2")
    A("s_bfe_u32 s6, s4, 0x20004")
    A("s_lshl2_add_u32 s6, s6, s5")
    A("s_lshl_b32 s6, s6, 19")
    A("s_lshr_b32 s7, s4, 6")
    A("s_and_b32 s57, s4, 15")
    A("s_lshl4_add_u32 s7, s7, s57")
    A("s_lshl_b32 s7, s7, 7")
    A("s_add_u32 s6, s6, s7")
    A("s_lshl_b32 s59, s5, 13")
    A(f"s_add_u32 m0, s59, {R0}")
    srd(8, 8388608)
    A("s_waitcnt lgkmcnt(0)")
    cnt = [0]
    ticks = sorted(set([8, 16, 24, 32, 39, trig_q, trig_o, trig_h]))
    ticked = set()
    def Wn(n): return W0 if n < nW0 + W0 else W1
    def pre_issue():
        n = cnt[0]; w = Wn(n)
        if n >= w:
            A(f"s_waitcnt vmcnt({w-1})")
            landed = n - w + 1
            todo = [t for t in ticks if t <= landed and t not in ticked]
            if todo:
                set_flag(max(todo)); ticked.update(todo)
        cnt[0] += 1
    def late_setup():
        A("s_load_dwordx2 s[16:17], s[0:1], 8")
        A("s_load_dwordx2 s[20:21], s[0:1], 16")
        A("s_load_dwordx2 s[24:25], s[0:1], 48")
        A("s_load_dwordx2 s[28:29], s[0:1], 64")
        A("s_load_dwordx2 s[32:33], s[0:1], 32")
        srd(16, 67108864); srd(20, 67108864); srd(28, 7340032); srd(32, 8388608); srd(12, WS_USED if not stamps else 0x10000000)
        A("s_mov_b32 s27, 0x20000")
        A("s_and_b32 s7, s4, 31")
        A("s_cmp_lt_u32 s7, 28")
        A("s_cselect_b32 s26, 7340032, 0")
        A("s_mov_b32 s58, 0x100000")
        A("v_mov_b32 v127, 0")
        A("s_lshl_b32 s57, s5, 2")
        A(f"v_mov_b32 v126, s57")
        A("v_mul_u32_u24 v4, 7168, v1")
        A("v_add_u32 v4, v4, v2")
        A("v_lshrrev_b32 v1, 4, v0")
        A("v_lshlrev_b32 v2, 1, v1" if not noswz else "v_mov_b32 v2, 0")
        A("v_xor_b32 v2, v0, v2")
        A("v_and_b32 v2, 15, v2")
        A("v_lshlrev_b32 v2, 4, v2")
        A("v_lshl_add_u32 v5, v1, 8, v2")
        A("v_xor_b32 v6, 0x80, v5" if not noswz else "v_mov_b32 v6, v5")
        A("v_lshl_add_u32 v7, v1, 11, v2")
        A("s_and_b32 s57, s5, 1")
        A("s_lshl_b32 s57, s57, 7")
        A("v_xor_b32 v7, s57, v7")
        A("v_xor_b32 v8, 0x80, v7")
        A("v_and_b32 v2, 15, v0")
        A("v_lshlrev_b32 v9, 4, v2")
        A("v_lshl_add_u32 v9, v1, 14, v9")
        A("v_and_b32 v10, 1, v1")
        A("v_lshl_add_u32 v10, v2, 1, v10")
        A("v_lshlrev_b32 v10, 5, v10")
        A("v_lshrrev_b32 v11, 5, v0")
        A("v_lshl_add_u32 v10, v11, 4, v10")
        A("v_bfe_u32 v11, v0, 3, 1")
        A("v_lshlrev_b32 v11, 7, v11")
        A("v_lshl_add_u32 v11, v1, 5, v11")
        A("v_and_b32 v2, 1, v0")
        A("v_lshlrev_b32 v2, 4, v2")
        A("v_mov_b32 v1, 0xffff")
        A("v_lshlrev_b32 v1, v2, v1")
        A("v_bfe_u32 v2, v0, 1, 2")
        for r in range(4):
            A(f"v_cmp_eq_u32 vcc, {r}, v2")
            A(f"v_cndmask_b32 v{12+r}, 0, v1, vcc")
        A("s_bfe_u32 s60, s4, 0x10005")
        A("s_lshr_b32 s61, s4, 6")
        A("s_lshl2_add_u32 s6, s60, s61")
        A("s_lshl_b32 s6, s6, 8")
        A("s_add_u32 s6, s6, s7")
        A("s_add_u32 s6, s6, 224")
        A("s_lshl_b32 s6, s6, 15")
        A("s_add_u32 s62, s6, s59")
        A("s_mul_i32 s60, s60, 28")
        A("s_add_u32 s60, s60, s7")
        A("s_lshl_b32 s60, s60, 7")
        A("s_lshl2_add_u32 s61, s61, s5")
        A(f"s_mul_i32 s61, s61, {64*7168}")
        A("s_add_u32 s63, s60, s61")
        A("s_waitcnt lgkmcnt(0)")
        A("s_barrier")
    for i in range(8):
        if i == min(W0, 8): late_setup()
        pre_issue()
        if i == 4: A("s_add_u32 m0, m0, 4096")
        A(f"buffer_load_dwordx4 v3, s[8:11], s6 offen offset:{(i&3)*1024} {ntflag} lds") if i < min(W0, 8) else \
        A(f"buffer_load_dwordx4 v3, s[8:11], s96 offen offset:{(i&3)*1024} {ntflag} lds")
        if i < 7:
            inc = 65536 - 1024 if (i & 3) != 3 else 65536 + 3072
            if i + 1 < min(W0, 8): A(f"s_add_u32 s6, s6, {inc}")
            elif i + 1 == min(W0, 8): A(f"s_add_u32 s96, s6, {inc}")
            else: A(f"s_add_u32 s96, s96, {inc}")
    stamp(1)
    A("s_branch L_Lmain")
    A("L_notL:")
    srd(36, 4096)
    A("v_lshlrev_b32 v1, 4, v0")
    A("v_mov_b32 v127, 0")
    A("s_lshl_b32 s6, s5, 11")
    A("s_setprio 2")
    A("s_and_b32 s7, s3, 14")
    A("s_cmp_eq_u32 s7, 8")
    A("s_cbranch_scc0 L_nox")
    A("s_waitcnt lgkmcnt(0)")
    A("buffer_load_dwordx4 v[4:7], v1, s[36:39], s6 offen")
    A("buffer_load_dwordx4 v[8:11], v1, s[36:39], s6 offen offset:1024")
    A("s_load_dword s57, s[12:13], 0")
    A("L_nox:")
    A("v_lshlrev_b32 v2, 2, v0")
    A("s_cmp_eq_u32 s3, 4")
    A("s_cbranch_scc0 L_noz")
    A("s_mov_b64 exec, 0xfff")
    A("ds_write_b32 v2, v127")
    A("s_mov_b64 exec, -1")
    A("s_waitcnt lgkmcnt(0)")
    A("L_noz:")
    A("s_barrier")
    srd(12, WS_USED if not stamps else 0x10000000)
    A("s_mov_b32 s58, 0x100000")
    A("s_lshl_b32 s6, s3, 2")
    A("v_mov_b32 v126, s6")
    if cut == 1:
        A("s_waitcnt lgkmcnt(0)")
        A("s_branch L_fin")
    A("s_cmp_lt_u32 s3, 8")
    A("s_cbranch_scc1 L_A")
    A("s_cmp_lt_u32 s5, 2")
    A("s_cbranch_scc1 L_ln")
    set_flag(2)
    A("s_waitcnt lgkmcnt(0)")
    A("s_branch L_Mmain")
    A("L_ln:")
    A(f"s_mul_i32 s6, s5, {XSTR}")
    A(f"s_add_u32 s6, s6, {XN}")
    A("v_add_u32 v1, s6, v1")
    A("s_mov_b32 s60, 1")
    A("s_waitcnt lgkmcnt(0)")
    A("s_mul_i32 s57, s57, 1664525")
    A("s_add_u32 s57, s57, 1013904223")
    A("v_mov_b32 v2, s57")
    A(f"ds_write_b32 v127, v2 offset:{TAGW}")
    A("s_waitcnt vmcnt(0)")
    stamp(1)
    A("L_lnloop:")
    for k in range(8):
        A(f"v_lshlrev_b32 v{16+2*k}, 16, v{4+k}")
        A(f"v_and_b32 v{17+2*k}, 0xffff0000, v{4+k}")
    for k in range(4): A(f"v_pk_add_f32 v[{32+2*k}:{33+2*k}], v[{16+4*k}:{17+4*k}], v[{18+4*k}:{19+4*k}]")
    A("v_pk_add_f32 v[32:33], v[32:33], v[34:35]")
    A("v_pk_add_f32 v[36:37], v[36:37], v[38:39]")
    A("v_pk_add_f32 v[32:33], v[32:33], v[36:37]")
    A("v_add_f32 v12, v32, v33")
    allred(12, 13, "v_add_f32", (8, 4, 2, 1))
    A(f"v_mul_f32 v12, {f32(1/1024)}, v12")
    for k in range(8): A(f"v_pk_add_f32 v[{32+2*k}:{33+2*k}], v[{16+2*k}:{17+2*k}], v[12:13] op_sel_hi:[1,0] neg_lo:[0,1] neg_hi:[0,1]")
    A("v_pk_mul_f32 v[14:15], v[32:33], v[32:33]")
    A("v_pk_mul_f32 v[48:49], v[34:35], v[34:35]")
    for k in range(2, 8, 2):
        A(f"v_pk_fma_f32 v[14:15], v[{32+2*k}:{33+2*k}], v[{32+2*k}:{33+2*k}], v[14:15]")
        A(f"v_pk_fma_f32 v[48:49], v[{34+2*k}:{35+2*k}], v[{34+2*k}:{35+2*k}], v[48:49]")
    A("v_pk_add_f32 v[14:15], v[14:15], v[48:49]")
    A("v_add_f32 v14, v14, v15")
    rne(12, 12)
    for k in range(8): A(f"v_pk_add_f32 v[{32+2*k}:{33+2*k}], v[{16+2*k}:{17+2*k}], v[12:13] op_sel_hi:[1,0] neg_lo:[0,1] neg_hi:[0,1]")
    allred(14, 15, "v_add_f32", (8, 4, 2, 1))
    A(f"v_mul_f32 v14, {f32(1/1024)}, v14")
    rne(14, 14)
    A(f"v_add_f32 v14, {f32(1e-5)}, v14")
    rne(14, 14)
    A("v_sqrt_f32 v14, v14")
    for k in range(8): A(f"v_cvt_pk_bf16_f32 v{4+k}, v{32+2*k}, v{33+2*k}")
    rne(14, 14)
    A("v_rcp_f32 v14, v14")
    for k in range(8):
        A(f"v_lshlrev_b32 v{16+2*k}, 16, v{4+k}")
        A(f"v_and_b32 v{17+2*k}, 0xffff0000, v{4+k}")
    for k in range(8): A(f"v_pk_mul_f32 v[{16+2*k}:{17+2*k}], v[{16+2*k}:{17+2*k}], v[14:15] op_sel_hi:[1,0]")
    for k in range(8): A(f"v_cvt_pk_bf16_f32 v{4+k}, v{16+2*k}, v{17+2*k}")
    A("ds_write_b128 v1, v[4:7]")
    A("ds_write_b128 v1, v[8:11] offset:1024")
    set_flag("s60")
    A(f"v_add_u32 v1, {YN-XN}, v1")
    A("s_add_u32 s60, s60, 1")
    A("s_cmp_eq_u32 s60, 2")
    A("s_cbranch_scc1 L_lnloop")
    stamp(2)
    A("L_Mmain:")
    if cut in (2, 3): A("s_branch L_fin")
    A("s_load_dwordx2 s[40:41], s[0:1], 56")
    srd(40, 7168)
    A("s_lshr_b32 s61, s4, 6")
    A("s_lshr_b32 s62, s4, 3")
    A("v_and_b32 v90, 31, v0")
    A("v_min_u32 v90, 27, v90")
    A("s_mul_i32 s6, s62, 28")
    A("v_add_u32 v91, s6, v90")
    A("v_lshrrev_b32 v92, 5, v0")
    A("v_mul_u32_u24 v93, 14336, v92")
    A("v_lshl_add_u32 v93, v91, 4, v93")
    A("v_lshlrev_b32 v91, 3, v91")
    A(f"v_mul_u32_u24 v92, {HSTR}, v92")
    A("v_lshl_add_u32 v92, v90, 3, v92")
    A("s_waitcnt lgkmcnt(0)")
    A("s_cmp_eq_u32 s5, 0")
    A("s_cbranch_scc0 L_nob1")
    A("buffer_load_dwordx2 v[94:95], v91, s[40:43], 0 offen")
    A("L_nob1:")
    gemv64(YN, W1B, 61, 2, 32, 3)
    A("s_and_b32 s7, s4, 31")
    A("s_cmp_ge_u32 s7, 28")
    A("s_cbranch_scc1 L_nohp")
    A("s_bfe_u32 s6, s4, 0x10005")
    A("s_mul_i32 s6, s6, 28")
    A("s_add_u32 s6, s6, s7")
    A("s_lshl2_add_u32 s6, s6, s5")
    A("s_lshl_b32 s6, s6, 6")
    A(f"s_mul_i32 s7, s61, {2*14336}")
    A("s_add_u32 s6, s6, s7")
    A(f"s_add_u32 s6, s6, {HP}")
    A("v_and_b32 v1, 1, v0")
    A("v_mul_u32_u24 v1, 14336, v1")
    A("v_and_b32 v2, 48, v0")
    A("v_add_u32 v1, v1, v2")
    tag4(12, 8)
    A("s_mov_b32 exec_lo, 0x30003")
    A("s_mov_b32 exec_hi, 0x30003")
    A("buffer_store_dwordx4 v[12:15], v1, s[12:15], s6 offen sc1")
    A("s_mov_b64 exec, -1")
    A("L_nohp:")
    stamp(5)
    A("v_lshrrev_b32 v1, 2, v0")
    A("v_and_b32 v2, 7, v1")
    A("s_lshl_b32 s6, s5, 1")
    A("v_xor_b32 v2, s6, v2")
    A("v_lshlrev_b32 v2, 5, v2")
    A("v_lshl_add_u32 v2, v1, 8, v2")
    A("v_and_b32 v3, 3, v0")
    A("v_lshl_add_u32 v2, v3, 3, v2")
    A(f"v_add_u32 v2, {R0}, v2")
    A("v_xor_b32 v3, 32, v2")
    A("v_and_b32 v4, 1, v0")
    A(f"v_mul_u32_u24 v5, {HSTR}, v4")
    A("v_lshrrev_b32 v6, 4, v0")
    A("v_lshl_add_u32 v5, v6, 3, v5")
    A(f"v_add_u32 v5, {HL}, v5")
    A("v_bfe_u32 v7, v0, 1, 1")
    A("v_lshl_add_u32 v6, v7, 2, v6")
    A("v_lshlrev_b32 v6, 5, v6")
    A("v_lshl_add_u32 v6, v4, 4, v6")
    A("v_cmp_eq_u32 s[98:99], 1, v7")
    A(f"s_mul_i32 s6, s62, {PSTR}")
    A("s_and_b32 s7, s4, 7")
    A("s_lshl2_add_u32 s7, s7, s5")
    A("s_lshl_b32 s7, s7, 8")
    A("s_add_u32 s6, s6, s7")
    A(f"s_add_u32 s63, s6, {ZP}")
    A("s_cmp_eq_u32 s5, 0")
    A("s_cbranch_scc1 L_hgather")
    set_flag(3)
    A("s_branch L_hdone")
    A("L_hgather:")
    wait_ge(FL_L, trig_h)
    stamp(6)
    l = lab("hp"); poll_head(l)
    for rs in range(4):
        A(f"s_mov_b32 s6, {HP + rs*2*14336}")
        A(f"buffer_load_dwordx4 v[{96+4*rs}:{99+4*rs}], v93, s[12:15], s6 offen sc1")
    A("s_waitcnt vmcnt(0)")
    untag([96, 100, 104, 108], 112)
    poll_tail(l, 112)
    stamp(7)
    A("v_pk_add_f32 v[96:97], v[96:97], v[100:101]")
    A("v_pk_add_f32 v[98:99], v[98:99], v[102:103]")
    A("v_pk_add_f32 v[104:105], v[104:105], v[108:109]")
    A("v_pk_add_f32 v[106:107], v[106:107], v[110:111]")
    A("v_pk_add_f32 v[96:97], v[96:97], v[104:105]")
    A("v_pk_add_f32 v[98:99], v[98:99], v[106:107]")
    A("v_cvt_pk_bf16_f32 v100, v96, v97")
    A("v_cvt_pk_bf16_f32 v101, v98, v99")
    for k in range(2):
        A(f"v_lshlrev_b32 v{96+2*k}, 16, v{100+k}"); A(f"v_and_b32 v{97+2*k}, 0xffff0000, v{100+k}")
        A(f"v_lshlrev_b32 v{104+2*k}, 16, v{94+k}"); A(f"v_and_b32 v{105+2*k}, 0xffff0000, v{94+k}")
    A("v_pk_add_f32 v[96:97], v[96:97], v[104:105]")
    A("v_pk_add_f32 v[98:99], v[98:99], v[106:107]")
    A("v_cvt_pk_bf16_f32 v100, v96, v97")
    A("v_cvt_pk_bf16_f32 v101, v98, v99")
    for k in range(2):
        A(f"v_lshlrev_b32 v{96+2*k}, 16, v{100+k}"); A(f"v_and_b32 v{97+2*k}, 0xffff0000, v{100+k}")
    kk = -2.0 * math.sqrt(2.0 / math.pi) * math.log2(math.e)
    A(f"s_mov_b32 s6, {f32(kk*0.044715)}")
    A(f"v_mov_b32 v108, {f32(kk)}")
    for k in range(4): A(f"v_mul_f32 v{100+k}, v{96+k}, v{96+k}")
    for k in range(4): A(f"v_fma_f32 v{100+k}, v{100+k}, s6, v108")
    for k in range(4): A(f"v_mul_f32 v{100+k}, v{100+k}, v{96+k}")
    for k in range(4): A(f"v_exp_f32 v{100+k}, v{100+k}")
    for k in range(4): A(f"v_add_f32 v{100+k}, 1.0, v{100+k}")
    for k in range(4): A(f"v_rcp_f32 v{100+k}, v{100+k}")
    for k in range(4): A(f"v_mul_f32 v{96+k}, v{96+k}, v{100+k}")
    A("v_cvt_pk_bf16_f32 v100, v96, v97")
    A("v_cvt_pk_bf16_f32 v101, v98, v99")
    A(f"ds_write_b64 v92, v[100:101] offset:{HL}")
    set_flag(3)
    A("L_hdone:")
    wait_ge(FL_L, 39)
    stamp(8)
    for kk_ in range(7):
        A(f"ds_read_b64_tr_b16 v[{16+2*kk_}:{17+2*kk_}], v2 offset:{kk_*4096}")
        A(f"ds_read_b64_tr_b16 v[{32+2*kk_}:{33+2*kk_}], v3 offset:{kk_*4096}")
    wait_ge(FL_M, 3)
    stamp(9)
    for kb in range(3): A(f"ds_read2_b64 v[{48+4*kb}:{51+4*kb}], v5 offset0:{kb*8} offset1:{kb*8+4}")
    A("ds_read_b64 v[60:61], v5 offset:192")
    A("s_waitcnt lgkmcnt(0)")
    A("v_mfma_f32_16x16x16_bf16 v[8:11], v[28:29], v[60:61], 0")
    A("v_mfma_f32_16x16x16_bf16 v[12:15], v[44:45], v[60:61], 0")
    for kb in range(3):
        A(f"v_mfma_f32_16x16x32_bf16 v[8:11], v[{16+4*kb}:{19+4*kb}], v[{48+4*kb}:{51+4*kb}], v[8:11]")
        A(f"v_mfma_f32_16x16x32_bf16 v[12:15], v[{32+4*kb}:{35+4*kb}], v[{48+4*kb}:{51+4*kb}], v[12:15]")
    for k in range(4): A(f"v_cndmask_b32 v{8+k}, v{8+k}, v{12+k}, s[98:99]")
    tag4(8, 8)
    A("s_mov_b32 exec_lo, 0xf000f")
    A("s_mov_b32 exec_hi, 0xf000f")
    A("buffer_store_dwordx4 v[8:11], v6, s[12:15], s63 offen sc1")
    A("s_mov_b64 exec, -1")
    if probe is not None and prole == 'M': pwrite()
    set_flag(4)
    stamp(10)
    A("s_branch L_fin")

    A("L_Lmain:")
    if W0 >= 8: late_setup()
    for name, rb, sr in (("k", KB, 16), ("v", VB, 20)):
        for i in range(8):
            pre_issue()
            if i == 0:
                if stag:
                    A("s_and_b32 s7, s4, 1"); A("s_lshl_b32 s7, s7, 12")
                    A("s_add_u32 s6, s62, s7"); A("s_add_u32 s7, s7, s59"); A(f"s_add_u32 m0, s7, {rb}"); so = "s6"
                else:
                    A(f"s_add_u32 m0, s59, {rb}"); so = "s62"
            if i == 4:
                if stag:
                    A("s_xor_b32 s6, s6, 4096"); A("s_xor_b32 s7, s7, 4096"); A(f"s_add_u32 m0, s7, {rb}")
                else:
                    A("s_add_u32 m0, m0, 4096"); A("s_add_u32 s6, s62, 4096"); so = "s6"
            A(f"buffer_load_dwordx4 v{5+(i&1)}, s[{sr}:{sr+3}], {so} offen offset:{(i&3)*1024} {ntflag} lds")
        stamp(2 if name == "k" else 3)
    for i in range(8):
        pre_issue()
        if i == 0: A(f"s_add_u32 m0, s59, {W1B}")
        if i == 4: A("s_add_u32 m0, m0, 4096")
        A(f"buffer_load_dwordx4 v4, s[24:27], s63 offen offset:{(i&3)*1024} {ntflag} lds")
        if i < 7: A(f"s_add_u32 s63, s63, {8*7168 - 1024 if (i & 3) != 3 else 8*7168 + 3072}")
    stamp(4)
    if not cut: wait_ge(FL_A, 1)
    A("s_lshr_b32 s6, s4, 3")
    A("s_lshl2_add_u32 s6, s6, s5")
    A(f"s_mul_i32 s6, s6, {28*2048}")
    A("s_and_b32 s7, s4, 7")
    A("s_lshl_b32 s7, s7, 8")
    A("s_add_u32 s6, s6, s7")
    A("s_mul_i32 s7, s5, 7168")
    for i in range(7):
        pre_issue()
        if i == 0: A(f"s_add_u32 m0, s7, {R0}")
        if i == 4: A("s_add_u32 m0, m0, 4096")
        A(f"buffer_load_dwordx4 v{7+(i&1)}, s[28:31], s6 offen offset:{(i&3)*1024} {ntflag} lds")
        if i < 6: A(f"s_add_u32 s6, s6, {8192 - 1024 if (i & 3) != 3 else 8192 + 3072}")
    stamp(5)
    A("s_lshr_b32 s60, s4, 1")
    A("s_and_b32 s7, s4, 1")
    A("s_lshl2_add_u32 s61, s7, s5")
    A("s_lshl_b32 s6, s60, 8")
    A("s_add_u32 s6, s6, s61")
    A("s_lshl_b32 s6, s6, 8")
    if stag:
        A("s_and_b32 s7, s60, 7"); A("s_lshl_b32 s7, s7, 11"); A("s_add_u32 s6, s6, s7")
    for t in range(8):
        pre_issue()
        A(f"buffer_load_dwordx4 v[{16+4*t}:{19+4*t}], v9, s[32:35], s6 offen {ntflag}")
        if t < 7: A(f"s_xor_b32 s6, s6, {(t ^ (t+1)) << 11}")
    for t in [t for t in ticks if t not in ticked]:
        A(f"s_waitcnt vmcnt({47-t})"); set_flag(t)
    stamp(6)
    A(f"s_mul_i32 s6, s60, {PSTR}")
    A("s_lshl_b32 s61, s61, 10")
    A("s_add_u32 s6, s6, s61")
    A(f"s_add_u32 s6, s6, {SP}")
    get_tag()
    if not cut: wait_ge(FL_A, 4)
    stamp(7)
    A(f"ds_read_b128 v[48:51], v11 offset:{OA}")
    A(f"ds_read_b128 v[52:55], v11 offset:{OA+16}")
    A("s_waitcnt lgkmcnt(0)")
    for t in range(8):
        for r in range(4): A(f"v_and_b32 v{56+4*t+r}, v{48+t}, v{12+r}")
    for t in range(8):
        A(f"s_waitcnt vmcnt({7-t})")
        c = "0" if t == 0 else "v[4:7]"
        A(f"v_mfma_f32_16x16x32_bf16 v[4:7], v[{56+4*t}:{59+4*t}], v[{16+4*t}:{19+4*t}], {c}")
    stamp(8)
    tag4(4, 4)
    A("buffer_store_dwordx4 v[4:7], v10, s[12:15], s6 offen sc1")
    if probe is not None and prole == 'L': pwrite()
    set_flag(64)
    stamp(9)
    A("s_branch L_fin")

    A("L_A:")
    A("s_load_dwordx2 s[44:45], s[0:1], 72")
    A("s_load_dwordx2 s[48:49], s[0:1], 80")
    srd(44, 2048); srd(48, 4096)
    A("s_lshr_b32 s61, s4, 6")
    A("s_bfe_u32 s60, s4, 0x10005")
    A("s_bfe_u32 s62, s4, 0x20004")
    A("v_lshrrev_b32 v1, 4, v0")
    A("s_lshl_b32 s6, s4, 2")
    A("v_add_lshl_u32 v116, v1, s6, 1")
    A("v_and_b32 v2, 1, v0")
    A("v_lshl_add_u32 v117, v2, 11, v116")
    A("s_waitcnt lgkmcnt(0)")
    A("s_cmp_eq_u32 s5, 3")
    A("s_cbranch_scc0 L_nofin0")
    A("buffer_load_ushort v118, v117, s[36:39], 0 offen")
    A("buffer_load_ushort v119, v116, s[44:47], 0 offen")
    A("buffer_load_ushort v115, v117, s[48:51], 0 offen")
    A("v_mul_u32_u24 v2, 0x3f0000, v2")
    A("buffer_load_dword v114, v2, s[12:15], 0 offen offset:128")
    A("L_nofin0:")
    if codepf:
        A("s_and_b32 s6, s4, 31")
        A("s_lshl2_add_u32 s6, s6, s5")
        A(f"s_cmp_eq_u32 s6, {28*4+2}")
        A("s_cbranch_scc0 L_nopf")
        A("s_getpc_b64 s[6:7]")
        A("L_pc:")
        A(f"s_sub_u32 s6, s6, L_pc-{KN}_kernel")
        A("s_subb_u32 s7, s7, 0")
        A(f"v_add_u32 v1, ((L_end-{KN}_kernel)>>7)-63, v0")
        A("v_max_i32 v1, 0, v1")
        A("v_lshlrev_b32 v1, 7, v1")
        A("v_mov_b32 v3, s7")
        A("v_add_co_u32 v2, vcc, s6, v1")
        A("v_addc_co_u32 v3, vcc, 0, v3, vcc")
        A("global_load_dword v113, v[2:3], off")
        A("L_nopf:")
    gemv64(XN, R0, 62, 1, 8, 1)
    set_flag(1)
    if cut == 2: A("s_branch L_fin")
    A("s_lshl3_add_u32 s6, s61, s62")
    A("s_lshl_b32 s6, s6, 12")
    A("s_and_b32 s7, s4, 15")
    A("s_lshl2_add_u32 s7, s7, s5")
    A("s_lshl_b32 s7, s7, 6")
    A("s_add_u32 s6, s6, s7")
    A(f"s_add_u32 s6, s6, {QP}")
    A("v_and_b32 v1, 1, v0")
    A("v_lshlrev_b32 v1, 14, v1")
    A("v_and_b32 v2, 48, v0")
    A("v_add_u32 v1, v1, v2")
    tag4(12, 8)
    A("s_mov_b32 exec_lo, 0x30003")
    A("s_mov_b32 exec_hi, 0x30003")
    A("buffer_store_dwordx4 v[12:15], v1, s[12:15], s6 offen sc1")
    A("s_mov_b64 exec, -1")
    stamp(3)
    if cut == 3: A("s_branch L_fin")
    A("v_lshlrev_b32 v1, 4, v0")
    A("s_lshl1_add_u32 s6, s61, s60")
    A("s_lshl4_add_u32 s6, s6, s5")
    A("s_lshl_b32 s6, s6, 10")
    A(f"s_add_u32 s6, s6, {QP}")
    A("v_add_u32 v2, s6, v1")
    A("v_lshrrev_b32 v3, 5, v0")
    A("s_lshl_b32 s6, s5, 1")
    A("v_add_u32 v3, s6, v3")
    A(f"v_mul_u32_u24 v3, {QSTR}, v3")
    A("v_and_b32 v4, 31, v0")
    A("v_lshl_add_u32 v3, v4, 3, v3")
    A("v_and_b32 v4, 7, v0")
    A("v_lshrrev_b32 v5, 4, v0")
    A(f"v_mul_u32_u24 v6, {QSTR}, v4")
    A("v_lshl_add_u32 v6, v5, 4, v6")
    A("v_lshlrev_b32 v7, 1, v4")
    A("v_xor_b32 v7, v7, v5")
    A("v_lshlrev_b32 v7, 4, v7")
    A("v_and_b32 v8, 15, v0")
    A("v_lshl_add_u32 v7, v8, 8, v7")
    A("s_lshl_b32 s6, s5, 13")
    A(f"s_add_u32 s6, s6, {KB}")
    A("v_add_u32 v8, s6, v7")
    A("v_xor_b32 v9, 64, v8")
    A("v_xor_b32 v10, 0x80, v8")
    A("v_xor_b32 v11, 0xc0, v8")
    A("v_lshlrev_b32 v12, 15, v4")
    A("v_and_b32 v13, 8, v0")
    A("v_lshl_add_u32 v12, v13, 3, v12")
    A("v_lshl_add_u32 v12, v5, 4, v12")
    A("v_cmp_eq_u32 s[98:99], 8, v13")
    A("v_lshlrev_b32 v13, 10, v4")
    A("v_lshrrev_b32 v14, 2, v0")
    A("v_and_b32 v15, 7, v14")
    A("s_lshl_b32 s6, s5, 1")
    A("v_xor_b32 v15, s6, v15")
    A("v_lshlrev_b32 v15, 5, v15")
    A("v_lshl_add_u32 v14, v14, 8, v15")
    A("v_and_b32 v15, 3, v0")
    A("v_lshl_add_u32 v14, v15, 3, v14")
    A(f"v_add_u32 v14, {VB}, v14")
    A("v_xor_b32 v15, 32, v14")
    A("s_mov_b32 s96, 4096"); A("s_mov_b32 s97, 8192"); A("s_mov_b32 s57, 12288")
    def qloads():
        for rs, so in enumerate(("0", "s96", "s97", "s57")):
            A(f"buffer_load_dwordx4 v[{16+4*rs}:{19+4*rs}], v2, s[12:15], {so} offen sc1")
    wait_ge(FL_L, trig_q)
    stamp(4)
    qloads()
    wait_ge(FL_L, 16)
    for T in range(2):
        for t in range(4): A(f"ds_read_b128 v[{48+16*T+4*t}:{51+16*T+4*t}], v{8+t} offset:{T*4096}")
    A("s_branch L_qchk")
    l = lab("qp"); poll_head(l)
    qloads()
    A("L_qchk:")
    A("s_waitcnt vmcnt(0)")
    untag([16, 20, 24, 28], 32)
    poll_tail(l, 32)
    stamp(5)
    A("v_pk_add_f32 v[16:17], v[16:17], v[20:21]")
    A("v_pk_add_f32 v[18:19], v[18:19], v[22:23]")
    A("v_pk_add_f32 v[24:25], v[24:25], v[28:29]")
    A("v_pk_add_f32 v[26:27], v[26:27], v[30:31]")
    A("v_pk_add_f32 v[16:17], v[16:17], v[24:25]")
    A("v_pk_add_f32 v[18:19], v[18:19], v[26:27]")
    A("v_cvt_pk_bf16_f32 v16, v16, v17")
    A("v_cvt_pk_bf16_f32 v17, v18, v19")
    A(f"ds_write_b64 v3, v[16:17] offset:{QL}")
    set_flag(2)
    wait_ge(FL_A, 2)
    for t in range(4): A(f"ds_read_b128 v[{16+4*t}:{19+4*t}], v6 offset:{QL+t*64}")
    A(f"s_mov_b32 s6, {f32(math.log2(math.e) / math.sqrt(128.0))}")
    for t in range(4):
        A(f"s_waitcnt lgkmcnt({3-t})")
        for T in range(2):
            c = "0" if t == 0 else f"v[{32+4*T}:{35+4*T}]"
            A(f"v_mfma_f32_16x16x32_bf16 v[{32+4*T}:{35+4*T}], v[{48+16*T+4*t}:{51+16*T+4*t}], v[{16+4*t}:{19+4*t}], {c}")
    A("s_lshl_b32 s7, s5, 10")
    A("v_add_u32 v2, s7, v1")
    A("s_lshl_b32 s7, s5, 2")
    A("v_add_u32 v3, s7, v1")
    for k in range(4): A(f"v_mov_b32 v{44+k}, 0x3f803f80")
    A("v_max3_f32 v40, v32, v33, v34")
    A("v_max3_f32 v41, v35, v36, v37")
    A("v_max3_f32 v40, v40, v38, v39")
    A("v_max_f32 v40, v40, v41")
    allred(40, 41, "v_max_f32", ())
    A("v_mul_f32 v40, s6, v40")
    for k in range(8): A(f"v_fma_f32 v{32+k}, v{32+k}, s6, -v40")
    for k in range(8): A(f"v_exp_f32 v{32+k}, v{32+k}")
    for k in range(4): A(f"v_cvt_pk_bf16_f32 v{32+k}, v{32+2*k}, v{33+2*k}")
    A(f"ds_write_b32 v3, v40 offset:{MX}")
    A(f"ds_write_b128 v2, v[32:35] offset:{PX}")
    set_flag(3)
    wait_ge(FL_A, 3)
    stamp(6)
    A(f"ds_read_b128 v[40:43], v1 offset:{MX}")
    for w in range(4): A(f"ds_read_b128 v[{16+4*w}:{19+4*w}], v1 offset:{PX+w*1024}")
    A("s_waitcnt lgkmcnt(4)")
    A("v_max3_f32 v36, v40, v41, v42")
    A("v_max_f32 v36, v36, v43")
    for w in range(4): A(f"v_sub_f32 v{40+w}, v{40+w}, v36")
    for w in range(4): A(f"v_exp_f32 v{40+w}, v{40+w}")
    A("s_waitcnt lgkmcnt(0)")
    for w in range(4): A(f"v_mfma_f32_16x16x32_bf16 v[{48+4*w}:{51+4*w}], v[44:47], v[{16+4*w}:{19+4*w}], 0")
    A("s_cmp_lt_u32 s5, 2")
    A("s_cbranch_scc1 L_noflag4")
    set_flag(4)
    A("L_noflag4:")
    A("s_and_b32 s7, s4, 63")
    A("s_cmp_eq_u32 s5, 2")
    A("s_cbranch_scc0 L_noml")
    A("s_nop 4")
    A("v_mul_f32 v37, v40, v48")
    for w in range(1, 4): A(f"v_fmac_f32 v37, v{40+w}, v{48+4*w}")
    A("v_mov_b32 v38, s56")
    A("v_mov_b32 v39, s56")
    A("s_lshl_b32 s6, s61, 9")
    A("s_add_u32 s6, s6, s7")
    A("s_lshl_b32 s6, s6, 4")
    A(f"s_add_u32 s6, s6, {ML}")
    A("s_mov_b64 exec, 0xff")
    A("buffer_store_dwordx4 v[36:39], v13, s[12:15], s6 offen sc1")
    A("s_mov_b64 exec, -1")
    A("L_noml:")
    A("s_lshl_b32 s6, s61, 5")
    A("s_add_u32 s6, s6, s5")
    A("s_lshl_b32 s6, s6, 6")
    A("s_add_u32 s6, s6, s7")
    A("s_lshl_b32 s6, s6, 7")
    A(f"s_add_u32 s6, s6, {OP}")
    wait_ge(FL_L, 24)
    stamp(7)
    for kb in range(4):
        for dt in range(2):
            for hh in range(2):
                r = 48 + 8*kb + 4*dt + 2*hh
                A(f"ds_read_b64_tr_b16 v[{r}:{r+1}], v{14+dt} offset:{kb*8192+hh*4096}")
    for kb in range(4):
        for dt in range(2):
            A(f"s_waitcnt lgkmcnt({14-4*kb-2*dt})")
            r = 48 + 8*kb + 4*dt; d = 80 + 8*kb + 4*dt
            A(f"v_mfma_f32_16x16x32_bf16 v[{d}:{d+3}], v[{r}:{r+3}], v[{16+4*kb}:{19+4*kb}], 0")
    for kb in range(4):
        for k in range(4): A(f"v_cndmask_b32 v{80+8*kb+k}, v{80+8*kb+k}, v{84+8*kb+k}, s[98:99]")
        for k in range(4):
            if kb == 0: A(f"v_mul_f32 v{32+k}, v40, v{80+k}")
            else: A(f"v_fmac_f32 v{32+k}, v{40+kb}, v{80+8*kb+k}")
    tag4(32, 32)
    A("buffer_store_dwordx4 v[32:35], v12, s[12:15], s6 offen sc1")
    stamp(8)
    A("s_cmp_eq_u32 s5, 2")
    A("s_cbranch_scc1 L_fin")
    A("s_cmp_eq_u32 s5, 3")
    A("s_cbranch_scc1 L_final")
    A("s_and_b32 s6, s4, 0xfe")
    A("s_add_u32 s6, s6, s5")
    A("s_lshl_b32 s6, s6, 12")
    A(f"s_add_u32 s96, s6, {OP}")
    A("s_lshr_b32 s6, s4, 3")
    A("s_lshl1_add_u32 s6, s6, s5")
    A("s_lshl_b32 s6, s6, 9")
    A(f"s_add_u32 s97, s6, {ML}")
    A("v_lshrrev_b32 v2, 3, v0")
    A("v_lshlrev_b32 v2, 4, v2")
    A("v_lshl_add_u32 v3, v4, 2, v5")
    if stag:
        A("s_bfe_u32 s6, s4, 0x30001")
        A("v_xor_b32 v3, s6, v3")
    A("v_lshlrev_b32 v3, 2, v3")
    A("s_lshl_b32 s6, s5, 7")
    A("v_add_u32 v3, s6, v3")
    wait_ge(FL_L, trig_o)
    stamp(9)
    l = lab("op"); poll_head(l)
    for i in range(4): A(f"buffer_load_dwordx4 v[{48+4*i}:{51+4*i}], v2, s[12:15], s97 offen offset:{i*128} sc1")
    for i in range(4): A(f"buffer_load_dwordx4 v[{16+4*i}:{19+4*i}], v1, s[12:15], s96 offen offset:{i*1024} sc1")
    A("s_waitcnt vmcnt(4)")
    for i in range(4): A(f"v_xor_b32 v{50+4*i}, s56, v{50+4*i}")
    A("v_max3_f32 v36, v48, v52, v56")
    A("v_or3_b32 v33, v50, v54, v58")
    A("v_max_f32 v36, v36, v60")
    allred(36, 37, "v_max_f32", (8,))
    for i in range(4): A(f"v_sub_f32 v{40+i}, v{48+4*i}, v36")
    for i in range(4): A(f"v_exp_f32 v{40+i}, v{40+i}")
    A("v_mul_f32 v36, v40, v49")
    for i in range(1, 4): A(f"v_fmac_f32 v36, v{40+i}, v{49+4*i}")
    allred(36, 37, "v_add_f32", (8,))
    A("v_rcp_f32 v36, v36")
    A("s_waitcnt vmcnt(0)")
    untag([16, 20, 24, 28], 32)
    A("v_or3_b32 v32, v32, v33, v62")
    poll_tail(l, 32)
    stamp(10)
    for k in range(4): A(f"v_mul_f32 v{16+k}, v40, v{16+k}")
    for i in range(1, 4):
        for k in range(4): A(f"v_fmac_f32 v{16+k}, v{40+i}, v{16+4*i+k}")
    tred4(16, (8,))
    A("v_mul_f32 v16, v16, v36")
    A("v_cvt_pk_bf16_f32 v16, v16, v16")
    A(f"ds_write_b32 v3, v16 offset:{OA}")
    set_flag(4)
    stamp(11)
    A("s_branch L_fin")
    A("L_final:")
    A("v_lshrrev_b32 v2, 1, v0")
    A(f"v_mul_u32_u24 v2, {PSTR}, v2")
    A("v_and_b32 v3, 1, v0")
    A("v_lshl_add_u32 v2, v3, 4, v2")
    A("s_lshl_b32 s6, s4, 5")
    A("v_add_u32 v2, s6, v2")
    A(f"s_mov_b32 s6, {ZP}")
    A(f"s_mov_b32 s60, {SP}"); A(f"s_mov_b32 s61, {SP+32*PSTR}"); A(f"s_mov_b32 s62, {SP+64*PSTR}"); A(f"s_mov_b32 s63, {SP+96*PSTR}")
    A("v_lshlrev_b32 v118, 16, v118")
    A("v_lshlrev_b32 v119, 16, v119")
    wait_ge(FL_M, 4)
    l = lab("zp"); poll_head(l)
    A("buffer_load_dwordx4 v[16:19], v2, s[12:15], s6 offen sc1")
    A("s_waitcnt vmcnt(0)")
    untag([16], 32)
    poll_tail(l, 32)
    stamp(9)
    tred4(16, (8, 4, 2))
    rne(16, 16)
    A("v_add_f32 v16, v16, v119")
    rne(16, 16)
    A(f"v_mul_f32 v17, {f32(-math.log2(math.e))}, v16")
    A("v_exp_f32 v17, v17")
    A("v_add_f32 v17, 1.0, v17")
    A("v_rcp_f32 v17, v17")
    A("v_mul_f32 v40, v16, v17")
    rne(40, 40)
    wait_ge(FL_L, 64)
    stamp(10)
    l = lab("sp"); poll_head(l)
    for i in range(4): A(f"buffer_load_dwordx4 v[{16+4*i}:{19+4*i}], v2, s[12:15], s{60+i} offen sc1")
    A("s_waitcnt vmcnt(0)")
    untag([16, 20, 24, 28], 32)
    poll_tail(l, 32)
    A("v_pk_add_f32 v[16:17], v[16:17], v[20:21]")
    A("v_pk_add_f32 v[18:19], v[18:19], v[22:23]")
    A("v_pk_add_f32 v[24:25], v[24:25], v[28:29]")
    A("v_pk_add_f32 v[26:27], v[26:27], v[30:31]")
    A("v_pk_add_f32 v[16:17], v[16:17], v[24:25]")
    A("v_pk_add_f32 v[18:19], v[18:19], v[26:27]")
    tred4(16, (8, 4, 2))
    rne(16, 16)
    A("v_mul_f32 v16, v16, v40")
    rne(16, 16)
    A("v_add_f32 v16, v16, v118")
    A("v_cvt_pk_bf16_f32 v16, v16, v16")
    A("s_mov_b32 exec_lo, 0x30003")
    A("s_mov_b32 exec_hi, 0x30003")
    A(f"buffer_store_short v16, v117, s[48:51], 0 offen {outflag}")
    stamp(11)
    if probe is not None:
        A("s_waitcnt lgkmcnt(0)")
        if prole == 'A':
            A(f"s_sub_u32 s6, s{64+2*probe}, s64")
        else:
            A("ds_read_b32 v20, v127 offset:52")
            A("s_waitcnt lgkmcnt(0)")
            A("v_readfirstlane_b32 s6, v20")
        A("s_min_u32 s6, s6, 3000")
        A(f"s_mul_i32 s6, s6, {pmul}")
        if pwg is not None:
            A(f"s_cmp_eq_u32 s4, {pwg}")
            A("s_cselect_b32 s6, s6, 0")
        A("L_probe:")
        A("s_memrealtime s[96:97]")
        A("s_waitcnt lgkmcnt(0)")
        A("s_sub_u32 s7, s96, s86")
        A("s_cmp_lt_u32 s7, s6")
        A("s_cbranch_scc1 L_probe")
    A("s_cmp_eq_u32 s4, 0")
    A("s_cbranch_scc0 L_fin")
    A("s_mov_b64 exec, 1")
    A("v_mov_b32 v17, s56")
    A("buffer_store_dword v17, v127, s[12:15], 0 offen sc1")
    A("L_fin:")
    if stamps and probe is None:
        A("s_mov_b64 exec, 1")
        A("s_waitcnt vmcnt(0) lgkmcnt(0)")
        A("s_mul_i32 s6, s2, 12")
        A("s_add_u32 s6, s6, s3")
        A(f"s_mul_i32 s6, s6, {NST*8}")
        A(f"s_add_u32 s6, s6, {128<<20}")
        for i in range(NST):
            A(f"v_mov_b32 v4, s{64+2*i}"); A(f"v_mov_b32 v5, s{65+2*i}")
            A(f"buffer_store_dwordx2 v[4:5], v127, s[12:15], s6 offen offset:{8*i}")
            A("s_nop 1")
    A("L_bail:")
    A("L_end:")
    A("s_endpgm")
    A('.section .rodata,"a"'); A(".p2align 6")
    A(f".amdhsa_kernel {KN}_kernel")
    for d in ("next_free_vgpr 128", "next_free_sgpr 102", "accum_offset 128", "group_segment_fixed_size 0", "kernarg_size 104",
              "user_sgpr_count 2", "user_sgpr_kernarg_segment_ptr 1", "system_sgpr_workgroup_id_x 1"):
        L.append("  .amdhsa_" + d)
    A(".end_amdhsa_kernel")
    lines = []
    for x in L: lines.extend(x.split("\n"))
    if stamps:
        i = next(i for i, x in enumerate(lines) if "s_memrealtime s[64:65]" in x)
        lines[i+1:i+1] = [f"    s_mov_b64 s[{64+2*k}:{65+2*k}], 0" for k in range(1, NST)]
    return "\n".join(pad(lines)) + "\n"

if __name__ == "__main__":
    import argparse, ast
    out = sys.argv[1]
    kw = {}
    for a in sys.argv[2:]:
        k, v = a.split("=")
        try: v = ast.literal_eval(v)
        except Exception: pass
        kw[k] = v
    open(out, "w").write(gen(**kw))
```

```python
import sys, math, struct
from asmlib import pad
KN = "recurrent_scan__sliding_block_cached__mixer_channel_mlp__decode"

def f32(x): return "0x%08x" % struct.unpack("<I", struct.pack("<f", x))[0]

QP = 0x010000; HP = 0x030000; ML = 0x050000; ZP = 0x060000; OP = 0x100000; SP = 0x200000
PSTR = 8320
WS_USED = 0x400000
FL_L = 0; FL_A = 16; FL_M = 32; TAGW = 48
OA = 64
HL = 512; HSTR = 288
MX = 1280
QL = 2304; QSTR = 272
XN = 4608; XSTR = 2112
YN = XN + 2 * XSTR
PX = 13056
R0 = 17408; KB = R0 + 32768; VB = KB + 32768; W1B = VB + 32768
LDS_BYTES = W1B + 32768

def gen(stamps=False, W0=8, W1=6, nW0=8, trig_q=10, trig_o=30, trig_h=35, codepf=True, ntflag="nt",
        outflag="sc1", sleep=True, header=True, pollsleep=0, probe=None, cut=0, noswz=False, noflag=False, stag=True, prole='A', pwg=None, pmul=1, tlbpf=False, pol=None):
    if probe is not None: stamps = True
    L = []
    P = {k: ntflag for k in ("wq", "k", "v", "w1", "w2", "wo")}
    if pol:
        for k, c in zip(("wq", "k", "v", "w1", "w2", "wo"), pol): P[k] = {"n": "nt", "d": "", "s": "sc1", "t": "sc1 nt", "u": "sc0 sc1 nt", "v": "sc0 sc1"}[c]
    def A(s=""): L.append(("    " + s) if not s.endswith(":") and not s.startswith(".") else s)
    uid = [0]
    def lab(n): uid[0] += 1; return f"L_{n}_{uid[0]}"
    NST = 12
    def stamp(i):
        if stamps: A(f"s_memrealtime s[{64+2*i}:{65+2*i}]")
    def srd(d, size):
        A(f"s_mov_b32 s{d+2}, {size}"); A(f"s_mov_b32 s{d+3}, 0x20000")
    def wait_ge(fl, th, t=120):
        l = lab("w")
        A(f"{l}:")
        A(f"ds_read_b128 v[{t}:{t+3}], v127 offset:{fl}")
        A("s_sub_u32 s58, s58, 1")
        A("s_cbranch_scc1 L_bail")
        A("s_waitcnt lgkmcnt(0)")
        A(f"v_min3_u32 v{t}, v{t}, v{t+1}, v{t+2}")
        A(f"v_min_u32 v{t}, v{t}, v{t+3}")
        A(f"v_cmp_gt_u32 vcc, {th}, v{t}")
        A(f"s_cbranch_vccnz {l}")
    def set_flag(val):
        A(f"v_mov_b32 v125, {val}")
        A("s_mov_b64 exec, 1")
        A("ds_write_b32 v126, v125")
        A("s_mov_b64 exec, -1")
    def get_tag():
        A(f"ds_read_b32 v124, v127 offset:{TAGW}")
        A("s_waitcnt lgkmcnt(0)")
        A("v_readfirstlane_b32 s56, v124")
        A("v_mov_b32 v124, 0xffffff00")
        A("s_and_b32 s52, s56, 0xff")
        A("s_bfe_u32 s53, s56, 0x80008")
        A("s_bfe_u32 s54, s56, 0x80010")
        A("s_lshr_b32 s55, s56, 24")
    def tag4(d, s):
        for k in range(4): A(f"v_and_or_b32 v{d+k}, v{s+k}, v124, s{52+k}")
    def untag(regs, bad):
        for b in regs:
            for k in range(4): A(f"v_xor_b32 v{b+k}, s{52+k}, v{b+k}")
        first = True
        for b in regs:
            if first:
                A(f"v_or3_b32 v{bad}, v{b}, v{b+1}, v{b+2}"); A(f"v_or_b32 v{bad}, v{bad}, v{b+3}"); first = False
            else:
                A(f"v_or3_b32 v{bad}, v{bad}, v{b}, v{b+1}"); A(f"v_or3_b32 v{bad}, v{bad}, v{b+2}, v{b+3}")
        A(f"v_and_b32 v{bad}, 0xff, v{bad}")
    def allred(v, t, op, rors):
        for sw in ("32", "16"):
            A(f"v_mov_b32 v{t}, v{v}")
            A(f"v_permlane{sw}_swap_b32 v{v}, v{t}")
            A(f"{op} v{v}, v{v}, v{t}")
        for r in rors:
            A(f"{op}_dpp v{v}, v{v}, v{v} row_ror:{r} row_mask:0xf bank_mask:0xf")
    def tred4(a, rors):
        A(f"v_permlane32_swap_b32 v{a}, v{a+2}")
        A(f"v_permlane32_swap_b32 v{a+1}, v{a+3}")
        A(f"v_add_f32 v{a}, v{a}, v{a+2}")
        A(f"v_add_f32 v{a+1}, v{a+1}, v{a+3}")
        A(f"v_permlane16_swap_b32 v{a}, v{a+1}")
        A(f"v_add_f32 v{a}, v{a}, v{a+1}")
        for r in rors:
            A(f"v_add_f32_dpp v{a}, v{a}, v{a} row_ror:{r} row_mask:0xf bank_mask:0xf")
    def rne(d, s):
        A(f"v_cvt_pk_bf16_f32 v{d}, v{s}, v{s}"); A(f"v_and_b32 v{d}, 0xffff0000, v{d}")
    def poll_tail(l, bad):
        A(f"v_cmp_ne_u32 vcc, 0, v{bad}")
        A(f"s_cbranch_vccnz {l}")
    def poll_head(l):
        A(f"{l}:")
        A("s_sub_u32 s58, s58, 64")
        A("s_cbranch_scc1 L_bail")
    def pwrite():
        l = lab("pw")
        A("s_waitcnt lgkmcnt(0)")
        A("s_cmp_eq_u32 s5, 0")
        A(f"s_cbranch_scc0 {l}")
        A(f"s_sub_u32 s7, s{64+2*probe}, s64")
        A("v_mov_b32 v123, s7")
        A("ds_write_b32 v127, v123 offset:52")
        A(f"{l}:")
    def gemv64(xb, rb, rs_sreg, need_m, need_l, st0):
        A("v_lshrrev_b32 v1, 2, v0")
        A("v_bfe_u32 v2, v0, 3, 2")
        A("v_xor_b32 v2, s5, v2")
        A("v_lshlrev_b32 v2, 5, v2")
        A("v_lshl_add_u32 v2, v1, 7, v2")
        A("v_and_b32 v3, 3, v0")
        A("v_lshl_add_u32 v2, v3, 3, v2")
        A(f"v_add_u32 v2, {rb}, v2")
        A("v_and_b32 v3, 1, v0")
        A(f"v_mul_u32_u24 v3, {XSTR}, v3")
        A("v_lshrrev_b32 v4, 4, v0")
        A("v_lshl_add_u32 v3, v4, 3, v3")
        A(f"s_lshl_b32 s6, s{rs_sreg}, 9")
        A(f"s_add_u32 s6, s6, {xb}")
        A("v_add_u32 v3, s6, v3")
        wait_ge(FL_M, need_m)
        stamp(st0)
        for kb in range(8):
            A(f"ds_read2_b64 v[{16+4*kb}:{19+4*kb}], v3 offset0:{kb*8} offset1:{kb*8+4}")
        get_tag()
        wait_ge(FL_L, need_l)
        stamp(st0 + 1)
        for kb in range(8):
            A(f"ds_read_b64_tr_b16 v[{48+4*kb}:{49+4*kb}], v2 offset:{kb*4096}")
            A(f"ds_read_b64_tr_b16 v[{50+4*kb}:{51+4*kb}], v2 offset:{kb*4096+2048}")
        for kb in range(8):
            A(f"s_waitcnt lgkmcnt({14-2*kb})")
            c = "0" if kb == 0 else "v[8:11]"
            A(f"v_mfma_f32_16x16x32_bf16 v[8:11], v[{48+4*kb}:{51+4*kb}], v[{16+4*kb}:{19+4*kb}], {c}")

    if header:
        L.append(open("cdna_kernels/%s.s.ref" % KN).read().split("; Override launch")[0].rstrip())
    L.append(f"; @launch grid=(256,1,1) block=(768,1,1) lds={LDS_BYTES}")
    A('.amdgcn_target "amdgcn-amd-amdhsa--gfx950"')
    A(".text")
    A(f".globl {KN}_kernel")
    A(".p2align 8")
    A(f".type {KN}_kernel,@function")
    A(f"{KN}_kernel:")
    stamp(0)
    A("s_load_dwordx2 s[8:9], s[0:1], 24")
    A("s_load_dwordx2 s[36:37], s[0:1], 0")
    A("s_load_dwordx2 s[12:13], s[0:1], 96")
    A("v_lshrrev_b32 v1, 6, v0")
    A("s_cmp_ge_u32 s2, 256")
    A("s_cbranch_scc1 L_end")
    A("v_readfirstlane_b32 s3, v1")
    A("v_and_b32 v0, 63, v0")
    A("s_and_b32 s4, s2, 7")
    A("s_lshl_b32 s4, s4, 5")
    A("s_lshr_b32 s6, s2, 3")
    A("s_or_b32 s4, s4, s6")
    A("s_and_b32 s5, s3, 3")
    A("s_cmp_ge_u32 s3, 4")
    A("s_cbranch_scc1 L_notL")
    A("v_lshrrev_b32 v1, 3, v0")
    A("v_and_b32 v2, 6, v1" if not noswz else "v_mov_b32 v2, 0")
    A("v_xor_b32 v2, v0, v2")
    A("v_and_b32 v2, 7, v2")
    A("v_lshlrev_b32 v2, 4, v2")
    A("v_lshl_add_u32 v3, v1, 13, v2")
    A("s_bfe_u32 s6, s4, 0x20004")
    A("s_lshl2_add_u32 s6, s6, s5")
    A("s_lshl_b32 s6, s6, 19")
    A("s_lshr_b32 s7, s4, 6")
    A("s_and_b32 s57, s4, 15")
    A("s_lshl4_add_u32 s7, s7, s57")
    A("s_lshl_b32 s7, s7, 7")
    A("s_add_u32 s6, s6, s7")
    A("s_lshl_b32 s59, s5, 13")
    A(f"s_add_u32 m0, s59, {R0}")
    srd(8, 8388608)
    A("s_waitcnt lgkmcnt(0)")
    cnt = [0]
    ticks = sorted(set([8, 16, 24, 32, 39, trig_q, trig_o, trig_h]))
    ticked = set()
    def Wn(n): return W0 if n < nW0 + W0 else W1
    def pre_issue():
        n = cnt[0]; w = Wn(n)
        if n >= w:
            A(f"s_waitcnt vmcnt({w-1})")
            landed = n - w + 1
            todo = [t for t in ticks if t <= landed and t not in ticked]
            if todo:
                set_flag(max(todo)); ticked.update(todo)
        cnt[0] += 1
    def late_setup():
        A("s_load_dwordx2 s[16:17], s[0:1], 8")
        A("s_load_dwordx2 s[20:21], s[0:1], 16")
        A("s_load_dwordx2 s[24:25], s[0:1], 48")
        A("s_load_dwordx2 s[28:29], s[0:1], 64")
        A("s_load_dwordx2 s[32:33], s[0:1], 32")
        srd(16, 67108864); srd(20, 67108864); srd(28, 7340032); srd(32, 8388608); srd(12, WS_USED if not stamps else 0x10000000)
        A("s_mov_b32 s27, 0x20000")
        A("s_and_b32 s7, s4, 31")
        A("s_cmp_lt_u32 s7, 28")
        A("s_cselect_b32 s26, 7340032, 0")
        A("s_mov_b32 s58, 0x100000")
        A("v_mov_b32 v127, 0")
        A("s_lshl_b32 s57, s5, 2")
        A(f"v_mov_b32 v126, s57")
        A("v_mul_u32_u24 v4, 7168, v1")
        A("v_add_u32 v4, v4, v2")
        A("v_lshrrev_b32 v1, 4, v0")
        A("v_lshlrev_b32 v2, 1, v1" if not noswz else "v_mov_b32 v2, 0")
        A("v_xor_b32 v2, v0, v2")
        A("v_and_b32 v2, 15, v2")
        A("v_lshlrev_b32 v2, 4, v2")
        A("v_lshl_add_u32 v5, v1, 8, v2")
        A("v_xor_b32 v6, 0x80, v5" if not noswz else "v_mov_b32 v6, v5")
        A("v_lshl_add_u32 v7, v1, 11, v2")
        A("s_and_b32 s57, s5, 1")
        A("s_lshl_b32 s57, s57, 7")
        A("v_xor_b32 v7, s57, v7")
        A("v_xor_b32 v8, 0x80, v7")
        A("v_and_b32 v2, 15, v0")
        A("v_lshlrev_b32 v9, 4, v2")
        A("v_lshl_add_u32 v9, v1, 14, v9")
        A("v_and_b32 v10, 1, v1")
        A("v_lshl_add_u32 v10, v2, 1, v10")
        A("v_lshlrev_b32 v10, 5, v10")
        A("v_lshrrev_b32 v11, 5, v0")
        A("v_lshl_add_u32 v10, v11, 4, v10")
        A("v_bfe_u32 v11, v0, 3, 1")
        A("v_lshlrev_b32 v11, 7, v11")
        A("v_lshl_add_u32 v11, v1, 5, v11")
        A("v_and_b32 v2, 1, v0")
        A("v_lshlrev_b32 v2, 4, v2")
        A("v_mov_b32 v1, 0xffff")
        A("v_lshlrev_b32 v1, v2, v1")
        A("v_bfe_u32 v2, v0, 1, 2")
        for r in range(4):
            A(f"v_cmp_eq_u32 vcc, {r}, v2")
            A(f"v_cndmask_b32 v{12+r}, 0, v1, vcc")
        A("s_bfe_u32 s60, s4, 0x10005")
        A("s_lshr_b32 s61, s4, 6")
        A("s_lshl2_add_u32 s6, s60, s61")
        A("s_lshl_b32 s6, s6, 8")
        A("s_add_u32 s6, s6, s7")
        A("s_add_u32 s6, s6, 224")
        A("s_lshl_b32 s6, s6, 15")
        A("s_add_u32 s62, s6, s59")
        A("s_mul_i32 s60, s60, 28")
        A("s_add_u32 s60, s60, s7")
        A("s_lshl_b32 s60, s60, 7")
        A("s_lshl2_add_u32 s61, s61, s5")
        A(f"s_mul_i32 s61, s61, {64*7168}")
        A("s_add_u32 s63, s60, s61")
        A("s_waitcnt lgkmcnt(0)")
        A("s_barrier")
    for i in range(8):
        if i == min(W0, 8): late_setup()
        pre_issue()
        if i == 4: A("s_add_u32 m0, m0, 4096")
        A(f"buffer_load_dwordx4 v3, s[8:11], s6 offen offset:{(i&3)*1024} {P['wq']} lds") if i < min(W0, 8) else \
        A(f"buffer_load_dwordx4 v3, s[8:11], s96 offen offset:{(i&3)*1024} {P['wq']} lds")
        if i < 7:
            inc = 65536 - 1024 if (i & 3) != 3 else 65536 + 3072
            if i + 1 < min(W0, 8): A(f"s_add_u32 s6, s6, {inc}")
            elif i + 1 == min(W0, 8): A(f"s_add_u32 s96, s6, {inc}")
            else: A(f"s_add_u32 s96, s96, {inc}")
    stamp(1)
    A("s_branch L_Lmain")
    A("L_notL:")
    srd(36, 4096)
    A("v_lshlrev_b32 v1, 4, v0")
    A("v_mov_b32 v127, 0")
    A("s_lshl_b32 s6, s5, 11")
    A("s_setprio 2")
    A("s_and_b32 s7, s3, 14")
    A("s_cmp_eq_u32 s7, 8")
    A("s_cbranch_scc0 L_nox")
    A("s_waitcnt lgkmcnt(0)")
    A("buffer_load_dwordx4 v[4:7], v1, s[36:39], s6 offen")
    A("buffer_load_dwordx4 v[8:11], v1, s[36:39], s6 offen offset:1024")
    A("s_load_dword s57, s[12:13], 0")
    A("L_nox:")
    A("v_lshlrev_b32 v2, 2, v0")
    A("s_cmp_eq_u32 s3, 4")
    A("s_cbranch_scc0 L_noz")
    A("s_mov_b64 exec, 0xfff")
    A("ds_write_b32 v2, v127")
    A("s_mov_b64 exec, -1")
    A("s_waitcnt lgkmcnt(0)")
    A("L_noz:")
    A("s_barrier")
    srd(12, WS_USED if not stamps else 0x10000000)
    A("s_mov_b32 s58, 0x100000")
    A("s_lshl_b32 s6, s3, 2")
    A("v_mov_b32 v126, s6")
    if cut == 1:
        A("s_waitcnt lgkmcnt(0)")
        A("s_branch L_fin")
    A("s_cmp_lt_u32 s3, 8")
    A("s_cbranch_scc1 L_A")
    A("s_cmp_lt_u32 s5, 2")
    A("s_cbranch_scc1 L_ln")
    set_flag(2)
    if tlbpf:
        A("s_cmp_eq_u32 s5, 2")
        A("s_cbranch_scc0 L_notlb")
        A("s_load_dwordx4 s[16:19], s[0:1], 8")
        A("s_load_dwordx2 s[24:25], s[0:1], 48")
        A("s_load_dwordx2 s[28:29], s[0:1], 64")
        A("s_load_dwordx2 s[32:33], s[0:1], 32")
        A("s_bfe_u32 s60, s4, 0x10005")
        A("s_lshr_b32 s61, s4, 6")
        A("s_lshl2_add_u32 s6, s60, s61")
        A("s_lshl_b32 s6, s6, 8")
        A("s_and_b32 s7, s4, 31")
        A("s_add_u32 s6, s6, s7")
        A("s_add_u32 s6, s6, 224")
        A("s_lshl_b32 s6, s6, 15")
        A("s_mul_i32 s7, s4, 28672")
        A("s_lshl_b32 s60, s4, 15")
        A("s_waitcnt lgkmcnt(0)")
        A("s_load_dword s20, s[16:17], s6")
        A("s_load_dword s21, s[18:19], s6")
        A("s_load_dword s22, s[24:25], s7")
        A("s_load_dword s23, s[28:29], s7")
        A("s_load_dword s26, s[32:33], s60")
        A("L_notlb:")
    A("s_waitcnt lgkmcnt(0)")
    A("s_branch L_Mmain")
    A("L_ln:")
    A(f"s_mul_i32 s6, s5, {XSTR}")
    A(f"s_add_u32 s6, s6, {XN}")
    A("v_add_u32 v1, s6, v1")
    A("s_mov_b32 s60, 1")
    A("s_waitcnt lgkmcnt(0)")
    A("s_mul_i32 s57, s57, 1664525")
    A("s_add_u32 s57, s57, 1013904223")
    A("v_mov_b32 v2, s57")
    A(f"ds_write_b32 v127, v2 offset:{TAGW}")
    A("s_waitcnt vmcnt(0)")
    stamp(1)
    A("L_lnloop:")
    for k in range(8):
        A(f"v_lshlrev_b32 v{16+2*k}, 16, v{4+k}")
        A(f"v_and_b32 v{17+2*k}, 0xffff0000, v{4+k}")
    for k in range(4): A(f"v_pk_add_f32 v[{32+2*k}:{33+2*k}], v[{16+4*k}:{17+4*k}], v[{18+4*k}:{19+4*k}]")
    A("v_pk_add_f32 v[32:33], v[32:33], v[34:35]")
    A("v_pk_add_f32 v[36:37], v[36:37], v[38:39]")
    A("v_pk_add_f32 v[32:33], v[32:33], v[36:37]")
    A("v_add_f32 v12, v32, v33")
    allred(12, 13, "v_add_f32", (8, 4, 2, 1))
    A(f"v_mul_f32 v12, {f32(1/1024)}, v12")
    for k in range(8): A(f"v_pk_add_f32 v[{32+2*k}:{33+2*k}], v[{16+2*k}:{17+2*k}], v[12:13] op_sel_hi:[1,0] neg_lo:[0,1] neg_hi:[0,1]")
    A("v_pk_mul_f32 v[14:15], v[32:33], v[32:33]")
    A("v_pk_mul_f32 v[48:49], v[34:35], v[34:35]")
    for k in range(2, 8, 2):
        A(f"v_pk_fma_f32 v[14:15], v[{32+2*k}:{33+2*k}], v[{32+2*k}:{33+2*k}], v[14:15]")
        A(f"v_pk_fma_f32 v[48:49], v[{34+2*k}:{35+2*k}], v[{34+2*k}:{35+2*k}], v[48:49]")
    A("v_pk_add_f32 v[14:15], v[14:15], v[48:49]")
    A("v_add_f32 v14, v14, v15")
    rne(12, 12)
    for k in range(8): A(f"v_pk_add_f32 v[{32+2*k}:{33+2*k}], v[{16+2*k}:{17+2*k}], v[12:13] op_sel_hi:[1,0] neg_lo:[0,1] neg_hi:[0,1]")
    allred(14, 15, "v_add_f32", (8, 4, 2, 1))
    A(f"v_mul_f32 v14, {f32(1/1024)}, v14")
    rne(14, 14)
    A(f"v_add_f32 v14, {f32(1e-5)}, v14")
    rne(14, 14)
    A("v_sqrt_f32 v14, v14")
    for k in range(8): A(f"v_cvt_pk_bf16_f32 v{4+k}, v{32+2*k}, v{33+2*k}")
    rne(14, 14)
    A("v_rcp_f32 v14, v14")
    for k in range(8):
        A(f"v_lshlrev_b32 v{16+2*k}, 16, v{4+k}")
        A(f"v_and_b32 v{17+2*k}, 0xffff0000, v{4+k}")
    for k in range(8): A(f"v_pk_mul_f32 v[{16+2*k}:{17+2*k}], v[{16+2*k}:{17+2*k}], v[14:15] op_sel_hi:[1,0]")
    for k in range(8): A(f"v_cvt_pk_bf16_f32 v{4+k}, v{16+2*k}, v{17+2*k}")
    A("ds_write_b128 v1, v[4:7]")
    A("ds_write_b128 v1, v[8:11] offset:1024")
    set_flag("s60")
    A(f"v_add_u32 v1, {YN-XN}, v1")
    A("s_add_u32 s60, s60, 1")
    A("s_cmp_eq_u32 s60, 2")
    A("s_cbranch_scc1 L_lnloop")
    stamp(2)
    A("L_Mmain:")
    if cut in (2, 3): A("s_branch L_fin")
    A("s_load_dwordx2 s[40:41], s[0:1], 56")
    srd(40, 7168)
    A("s_lshr_b32 s61, s4, 6")
    A("s_lshr_b32 s62, s4, 3")
    A("v_and_b32 v90, 31, v0")
    A("v_min_u32 v90, 27, v90")
    A("s_mul_i32 s6, s62, 28")
    A("v_add_u32 v91, s6, v90")
    A("v_lshrrev_b32 v92, 5, v0")
    A("v_mul_u32_u24 v93, 14336, v92")
    A("v_lshl_add_u32 v93, v91, 4, v93")
    A("v_lshlrev_b32 v91, 3, v91")
    A(f"v_mul_u32_u24 v92, {HSTR}, v92")
    A("v_lshl_add_u32 v92, v90, 3, v92")
    A("s_waitcnt lgkmcnt(0)")
    A("s_cmp_eq_u32 s5, 0")
    A("s_cbranch_scc0 L_nob1")
    A("buffer_load_dwordx2 v[94:95], v91, s[40:43], 0 offen")
    A("L_nob1:")
    gemv64(YN, W1B, 61, 2, 32, 3)
    A("s_and_b32 s7, s4, 31")
    A("s_cmp_ge_u32 s7, 28")
    A("s_cbranch_scc1 L_nohp")
    A("s_bfe_u32 s6, s4, 0x10005")
    A("s_mul_i32 s6, s6, 28")
    A("s_add_u32 s6, s6, s7")
    A("s_lshl2_add_u32 s6, s6, s5")
    A("s_lshl_b32 s6, s6, 6")
    A(f"s_mul_i32 s7, s61, {2*14336}")
    A("s_add_u32 s6, s6, s7")
    A(f"s_add_u32 s6, s6, {HP}")
    A("v_and_b32 v1, 1, v0")
    A("v_mul_u32_u24 v1, 14336, v1")
    A("v_and_b32 v2, 48, v0")
    A("v_add_u32 v1, v1, v2")
    tag4(12, 8)
    A("s_mov_b32 exec_lo, 0x30003")
    A("s_mov_b32 exec_hi, 0x30003")
    A("buffer_store_dwordx4 v[12:15], v1, s[12:15], s6 offen sc1")
    A("s_mov_b64 exec, -1")
    A("L_nohp:")
    stamp(5)
    A("v_lshrrev_b32 v1, 2, v0")
    A("v_and_b32 v2, 7, v1")
    A("s_lshl_b32 s6, s5, 1")
    A("v_xor_b32 v2, s6, v2")
    A("v_lshlrev_b32 v2, 5, v2")
    A("v_lshl_add_u32 v2, v1, 8, v2")
    A("v_and_b32 v3, 3, v0")
    A("v_lshl_add_u32 v2, v3, 3, v2")
    A(f"v_add_u32 v2, {R0}, v2")
    A("v_xor_b32 v3, 32, v2")
    A("v_and_b32 v4, 1, v0")
    A(f"v_mul_u32_u24 v5, {HSTR}, v4")
    A("v_lshrrev_b32 v6, 4, v0")
    A("v_lshl_add_u32 v5, v6, 3, v5")
    A(f"v_add_u32 v5, {HL}, v5")
    A("v_bfe_u32 v7, v0, 1, 1")
    A("v_lshl_add_u32 v6, v7, 2, v6")
    A("v_lshlrev_b32 v6, 5, v6")
    A("v_lshl_add_u32 v6, v4, 4, v6")
    A("v_cmp_eq_u32 s[98:99], 1, v7")
    A(f"s_mul_i32 s6, s62, {PSTR}")
    A("s_and_b32 s7, s4, 7")
    A("s_lshl2_add_u32 s7, s7, s5")
    A("s_lshl_b32 s7, s7, 8")
    A("s_add_u32 s6, s6, s7")
    A(f"s_add_u32 s63, s6, {ZP}")
    A("s_cmp_eq_u32 s5, 0")
    A("s_cbranch_scc1 L_hgather")
    set_flag(3)
    A("s_branch L_hdone")
    A("L_hgather:")
    wait_ge(FL_L, trig_h)
    stamp(6)
    l = lab("hp"); poll_head(l)
    for rs in range(4):
        A(f"s_mov_b32 s6, {HP + rs*2*14336}")
        A(f"buffer_load_dwordx4 v[{96+4*rs}:{99+4*rs}], v93, s[12:15], s6 offen sc1")
    A("s_waitcnt vmcnt(0)")
    untag([96, 100, 104, 108], 112)
    poll_tail(l, 112)
    stamp(7)
    A("v_pk_add_f32 v[96:97], v[96:97], v[100:101]")
    A("v_pk_add_f32 v[98:99], v[98:99], v[102:103]")
    A("v_pk_add_f32 v[104:105], v[104:105], v[108:109]")
    A("v_pk_add_f32 v[106:107], v[106:107], v[110:111]")
    A("v_pk_add_f32 v[96:97], v[96:97], v[104:105]")
    A("v_pk_add_f32 v[98:99], v[98:99], v[106:107]")
    A("v_cvt_pk_bf16_f32 v100, v96, v97")
    A("v_cvt_pk_bf16_f32 v101, v98, v99")
    for k in range(2):
        A(f"v_lshlrev_b32 v{96+2*k}, 16, v{100+k}"); A(f"v_and_b32 v{97+2*k}, 0xffff0000, v{100+k}")
        A(f"v_lshlrev_b32 v{104+2*k}, 16, v{94+k}"); A(f"v_and_b32 v{105+2*k}, 0xffff0000, v{94+k}")
    A("v_pk_add_f32 v[96:97], v[96:97], v[104:105]")
    A("v_pk_add_f32 v[98:99], v[98:99], v[106:107]")
    A("v_cvt_pk_bf16_f32 v100, v96, v97")
    A("v_cvt_pk_bf16_f32 v101, v98, v99")
    for k in range(2):
        A(f"v_lshlrev_b32 v{96+2*k}, 16, v{100+k}"); A(f"v_and_b32 v{97+2*k}, 0xffff0000, v{100+k}")
    kk = -2.0 * math.sqrt(2.0 / math.pi) * math.log2(math.e)
    A(f"s_mov_b32 s6, {f32(kk*0.044715)}")
    A(f"v_mov_b32 v108, {f32(kk)}")
    for k in range(4): A(f"v_mul_f32 v{100+k}, v{96+k}, v{96+k}")
    for k in range(4): A(f"v_fma_f32 v{100+k}, v{100+k}, s6, v108")
    for k in range(4): A(f"v_mul_f32 v{100+k}, v{100+k}, v{96+k}")
    for k in range(4): A(f"v_exp_f32 v{100+k}, v{100+k}")
    for k in range(4): A(f"v_add_f32 v{100+k}, 1.0, v{100+k}")
    for k in range(4): A(f"v_rcp_f32 v{100+k}, v{100+k}")
    for k in range(4): A(f"v_mul_f32 v{96+k}, v{96+k}, v{100+k}")
    A("v_cvt_pk_bf16_f32 v100, v96, v97")
    A("v_cvt_pk_bf16_f32 v101, v98, v99")
    A(f"ds_write_b64 v92, v[100:101] offset:{HL}")
    set_flag(3)
    A("L_hdone:")
    wait_ge(FL_L, 39)
    stamp(8)
    for kk_ in range(7):
        A(f"ds_read_b64_tr_b16 v[{16+2*kk_}:{17+2*kk_}], v2 offset:{kk_*4096}")
        A(f"ds_read_b64_tr_b16 v[{32+2*kk_}:{33+2*kk_}], v3 offset:{kk_*4096}")
    wait_ge(FL_M, 3)
    stamp(9)
    for kb in range(3): A(f"ds_read2_b64 v[{48+4*kb}:{51+4*kb}], v5 offset0:{kb*8} offset1:{kb*8+4}")
    A("ds_read_b64 v[60:61], v5 offset:192")
    A("s_waitcnt lgkmcnt(0)")
    A("v_mfma_f32_16x16x16_bf16 v[8:11], v[28:29], v[60:61], 0")
    A("v_mfma_f32_16x16x16_bf16 v[12:15], v[44:45], v[60:61], 0")
    for kb in range(3):
        A(f"v_mfma_f32_16x16x32_bf16 v[8:11], v[{16+4*kb}:{19+4*kb}], v[{48+4*kb}:{51+4*kb}], v[8:11]")
        A(f"v_mfma_f32_16x16x32_bf16 v[12:15], v[{32+4*kb}:{35+4*kb}], v[{48+4*kb}:{51+4*kb}], v[12:15]")
    for k in range(4): A(f"v_cndmask_b32 v{8+k}, v{8+k}, v{12+k}, s[98:99]")
    tag4(8, 8)
    A("s_mov_b32 exec_lo, 0xf000f")
    A("s_mov_b32 exec_hi, 0xf000f")
    A("buffer_store_dwordx4 v[8:11], v6, s[12:15], s63 offen sc1")
    A("s_mov_b64 exec, -1")
    if probe is not None and prole == 'M': pwrite()
    set_flag(4)
    stamp(10)
    A("s_branch L_fin")

    A("L_Lmain:")
    if W0 >= 8: late_setup()
    for name, rb, sr in (("k", KB, 16), ("v", VB, 20)):
        for i in range(8):
            pre_issue()
            if i == 0:
                if stag:
                    A("s_and_b32 s7, s4, 1"); A("s_lshl_b32 s7, s7, 12")
                    A("s_add_u32 s6, s62, s7"); A("s_add_u32 s7, s7, s59"); A(f"s_add_u32 m0, s7, {rb}"); so = "s6"
                else:
                    A(f"s_add_u32 m0, s59, {rb}"); so = "s62"
            if i == 4:
                if stag:
                    A("s_xor_b32 s6, s6, 4096"); A("s_xor_b32 s7, s7, 4096"); A(f"s_add_u32 m0, s7, {rb}")
                else:
                    A("s_add_u32 m0, m0, 4096"); A("s_add_u32 s6, s62, 4096"); so = "s6"
            A(f"buffer_load_dwordx4 v{5+(i&1)}, s[{sr}:{sr+3}], {so} offen offset:{(i&3)*1024} {P[name]} lds")
        stamp(2 if name == "k" else 3)
    for i in range(8):
        pre_issue()
        if i == 0: A(f"s_add_u32 m0, s59, {W1B}")
        if i == 4: A("s_add_u32 m0, m0, 4096")
        A(f"buffer_load_dwordx4 v4, s[24:27], s63 offen offset:{(i&3)*1024} {P['w1']} lds")
        if i < 7: A(f"s_add_u32 s63, s63, {8*7168 - 1024 if (i & 3) != 3 else 8*7168 + 3072}")
    stamp(4)
    if not cut: wait_ge(FL_A, 1)
    A("s_lshr_b32 s6, s4, 3")
    A("s_lshl2_add_u32 s6, s6, s5")
    A(f"s_mul_i32 s6, s6, {28*2048}")
    A("s_and_b32 s7, s4, 7")
    A("s_lshl_b32 s7, s7, 8")
    A("s_add_u32 s6, s6, s7")
    A("s_mul_i32 s7, s5, 7168")
    for i in range(7):
        pre_issue()
        if i == 0: A(f"s_add_u32 m0, s7, {R0}")
        if i == 4: A("s_add_u32 m0, m0, 4096")
        A(f"buffer_load_dwordx4 v{7+(i&1)}, s[28:31], s6 offen offset:{(i&3)*1024} {P['w2']} lds")
        if i < 6: A(f"s_add_u32 s6, s6, {8192 - 1024 if (i & 3) != 3 else 8192 + 3072}")
    stamp(5)
    A("s_lshr_b32 s60, s4, 1")
    A("s_and_b32 s7, s4, 1")
    A("s_lshl2_add_u32 s61, s7, s5")
    A("s_lshl_b32 s6, s60, 8")
    A("s_add_u32 s6, s6, s61")
    A("s_lshl_b32 s6, s6, 8")
    if stag:
        A("s_and_b32 s7, s60, 7"); A("s_lshl_b32 s7, s7, 11"); A("s_add_u32 s6, s6, s7")
    for t in range(8):
        pre_issue()
        A(f"buffer_load_dwordx4 v[{16+4*t}:{19+4*t}], v9, s[32:35], s6 offen {P['wo']}")
        if t < 7: A(f"s_xor_b32 s6, s6, {(t ^ (t+1)) << 11}")
    for t in [t for t in ticks if t not in ticked]:
        A(f"s_waitcnt vmcnt({47-t})"); set_flag(t)
    stamp(6)
    A(f"s_mul_i32 s6, s60, {PSTR}")
    A("s_lshl_b32 s61, s61, 10")
    A("s_add_u32 s6, s6, s61")
    A(f"s_add_u32 s6, s6, {SP}")
    get_tag()
    if not cut: wait_ge(FL_A, 4)
    stamp(7)
    A(f"ds_read_b128 v[48:51], v11 offset:{OA}")
    A(f"ds_read_b128 v[52:55], v11 offset:{OA+16}")
    A("s_waitcnt lgkmcnt(0)")
    for t in range(8):
        for r in range(4): A(f"v_and_b32 v{56+4*t+r}, v{48+t}, v{12+r}")
    for t in range(8):
        A(f"s_waitcnt vmcnt({7-t})")
        c = "0" if t == 0 else "v[4:7]"
        A(f"v_mfma_f32_16x16x32_bf16 v[4:7], v[{56+4*t}:{59+4*t}], v[{16+4*t}:{19+4*t}], {c}")
    stamp(8)
    tag4(4, 4)
    A("buffer_store_dwordx4 v[4:7], v10, s[12:15], s6 offen sc1")
    if probe is not None and prole == 'L': pwrite()
    set_flag(64)
    stamp(9)
    A("s_branch L_fin")

    A("L_A:")
    A("s_load_dwordx2 s[44:45], s[0:1], 72")
    A("s_load_dwordx2 s[48:49], s[0:1], 80")
    srd(44, 2048); srd(48, 4096)
    A("s_lshr_b32 s61, s4, 6")
    A("s_bfe_u32 s60, s4, 0x10005")
    A("s_bfe_u32 s62, s4, 0x20004")
    A("v_lshrrev_b32 v1, 4, v0")
    A("s_lshl_b32 s6, s4, 2")
    A("v_add_lshl_u32 v116, v1, s6, 1")
    A("v_and_b32 v2, 1, v0")
    A("v_lshl_add_u32 v117, v2, 11, v116")
    A("s_waitcnt lgkmcnt(0)")
    A("s_cmp_eq_u32 s5, 3")
    A("s_cbranch_scc0 L_nofin0")
    A("buffer_load_ushort v118, v117, s[36:39], 0 offen")
    A("buffer_load_ushort v119, v116, s[44:47], 0 offen")
    A("buffer_load_ushort v115, v117, s[48:51], 0 offen")
    A("v_mul_u32_u24 v2, 0x3f0000, v2")
    A("buffer_load_dword v114, v2, s[12:15], 0 offen offset:128")
    A("L_nofin0:")
    if codepf:
        A("s_and_b32 s6, s4, 31")
        A("s_lshl2_add_u32 s6, s6, s5")
        A(f"s_cmp_eq_u32 s6, {28*4+2}")
        A("s_cbranch_scc0 L_nopf")
        A("s_getpc_b64 s[6:7]")
        A("L_pc:")
        A(f"s_sub_u32 s6, s6, L_pc-{KN}_kernel")
        A("s_subb_u32 s7, s7, 0")
        A(f"v_add_u32 v1, ((L_end-{KN}_kernel)>>7)-63, v0")
        A("v_max_i32 v1, 0, v1")
        A("v_lshlrev_b32 v1, 7, v1")
        A("v_mov_b32 v3, s7")
        A("v_add_co_u32 v2, vcc, s6, v1")
        A("v_addc_co_u32 v3, vcc, 0, v3, vcc")
        A("global_load_dword v113, v[2:3], off")
        A("L_nopf:")
    gemv64(XN, R0, 62, 1, 8, 1)
    set_flag(1)
    if cut == 2: A("s_branch L_fin")
    A("s_lshl3_add_u32 s6, s61, s62")
    A("s_lshl_b32 s6, s6, 12")
    A("s_and_b32 s7, s4, 15")
    A("s_lshl2_add_u32 s7, s7, s5")
    A("s_lshl_b32 s7, s7, 6")
    A("s_add_u32 s6, s6, s7")
    A(f"s_add_u32 s6, s6, {QP}")
    A("v_and_b32 v1, 1, v0")
    A("v_lshlrev_b32 v1, 14, v1")
    A("v_and_b32 v2, 48, v0")
    A("v_add_u32 v1, v1, v2")
    tag4(12, 8)
    A("s_mov_b32 exec_lo, 0x30003")
    A("s_mov_b32 exec_hi, 0x30003")
    A("buffer_store_dwordx4 v[12:15], v1, s[12:15], s6 offen sc1")
    A("s_mov_b64 exec, -1")
    stamp(3)
    if cut == 3: A("s_branch L_fin")
    A("v_lshlrev_b32 v1, 4, v0")
    A("s_lshl1_add_u32 s6, s61, s60")
    A("s_lshl4_add_u32 s6, s6, s5")
    A("s_lshl_b32 s6, s6, 10")
    A(f"s_add_u32 s6, s6, {QP}")
    A("v_add_u32 v2, s6, v1")
    A("v_lshrrev_b32 v3, 5, v0")
    A("s_lshl_b32 s6, s5, 1")
    A("v_add_u32 v3, s6, v3")
    A(f"v_mul_u32_u24 v3, {QSTR}, v3")
    A("v_and_b32 v4, 31, v0")
    A("v_lshl_add_u32 v3, v4, 3, v3")
    A("v_and_b32 v4, 7, v0")
    A("v_lshrrev_b32 v5, 4, v0")
    A(f"v_mul_u32_u24 v6, {QSTR}, v4")
    A("v_lshl_add_u32 v6, v5, 4, v6")
    A("v_lshlrev_b32 v7, 1, v4")
    A("v_xor_b32 v7, v7, v5")
    A("v_lshlrev_b32 v7, 4, v7")
    A("v_and_b32 v8, 15, v0")
    A("v_lshl_add_u32 v7, v8, 8, v7")
    A("s_lshl_b32 s6, s5, 13")
    A(f"s_add_u32 s6, s6, {KB}")
    A("v_add_u32 v8, s6, v7")
    A("v_xor_b32 v9, 64, v8")
    A("v_xor_b32 v10, 0x80, v8")
    A("v_xor_b32 v11, 0xc0, v8")
    A("v_lshlrev_b32 v12, 15, v4")
    A("v_and_b32 v13, 8, v0")
    A("v_lshl_add_u32 v12, v13, 3, v12")
    A("v_lshl_add_u32 v12, v5, 4, v12")
    A("v_cmp_eq_u32 s[98:99], 8, v13")
    A("v_lshlrev_b32 v13, 10, v4")
    A("v_lshrrev_b32 v14, 2, v0")
    A("v_and_b32 v15, 7, v14")
    A("s_lshl_b32 s6, s5, 1")
    A("v_xor_b32 v15, s6, v15")
    A("v_lshlrev_b32 v15, 5, v15")
    A("v_lshl_add_u32 v14, v14, 8, v15")
    A("v_and_b32 v15, 3, v0")
    A("v_lshl_add_u32 v14, v15, 3, v14")
    A(f"v_add_u32 v14, {VB}, v14")
    A("v_xor_b32 v15, 32, v14")
    A("s_mov_b32 s96, 4096"); A("s_mov_b32 s97, 8192"); A("s_mov_b32 s57, 12288")
    def qloads():
        for rs, so in enumerate(("0", "s96", "s97", "s57")):
            A(f"buffer_load_dwordx4 v[{16+4*rs}:{19+4*rs}], v2, s[12:15], {so} offen sc1")
    wait_ge(FL_L, trig_q)
    stamp(4)
    qloads()
    wait_ge(FL_L, 16)
    for T in range(2):
        for t in range(4): A(f"ds_read_b128 v[{48+16*T+4*t}:{51+16*T+4*t}], v{8+t} offset:{T*4096}")
    A("s_branch L_qchk")
    l = lab("qp"); poll_head(l)
    qloads()
    A("L_qchk:")
    A("s_waitcnt vmcnt(0)")
    untag([16, 20, 24, 28], 32)
    poll_tail(l, 32)
    stamp(5)
    A("v_pk_add_f32 v[16:17], v[16:17], v[20:21]")
    A("v_pk_add_f32 v[18:19], v[18:19], v[22:23]")
    A("v_pk_add_f32 v[24:25], v[24:25], v[28:29]")
    A("v_pk_add_f32 v[26:27], v[26:27], v[30:31]")
    A("v_pk_add_f32 v[16:17], v[16:17], v[24:25]")
    A("v_pk_add_f32 v[18:19], v[18:19], v[26:27]")
    A("v_cvt_pk_bf16_f32 v16, v16, v17")
    A("v_cvt_pk_bf16_f32 v17, v18, v19")
    A(f"ds_write_b64 v3, v[16:17] offset:{QL}")
    set_flag(2)
    wait_ge(FL_A, 2)
    for t in range(4): A(f"ds_read_b128 v[{16+4*t}:{19+4*t}], v6 offset:{QL+t*64}")
    A(f"s_mov_b32 s6, {f32(math.log2(math.e) / math.sqrt(128.0))}")
    for t in range(4):
        A(f"s_waitcnt lgkmcnt({3-t})")
        for T in range(2):
            c = "0" if t == 0 else f"v[{32+4*T}:{35+4*T}]"
            A(f"v_mfma_f32_16x16x32_bf16 v[{32+4*T}:{35+4*T}], v[{48+16*T+4*t}:{51+16*T+4*t}], v[{16+4*t}:{19+4*t}], {c}")
    A("s_lshl_b32 s7, s5, 10")
    A("v_add_u32 v2, s7, v1")
    A("s_lshl_b32 s7, s5, 2")
    A("v_add_u32 v3, s7, v1")
    for k in range(4): A(f"v_mov_b32 v{44+k}, 0x3f803f80")
    A("v_max3_f32 v40, v32, v33, v34")
    A("v_max3_f32 v41, v35, v36, v37")
    A("v_max3_f32 v40, v40, v38, v39")
    A("v_max_f32 v40, v40, v41")
    allred(40, 41, "v_max_f32", ())
    A("v_mul_f32 v40, s6, v40")
    for k in range(8): A(f"v_fma_f32 v{32+k}, v{32+k}, s6, -v40")
    for k in range(8): A(f"v_exp_f32 v{32+k}, v{32+k}")
    for k in range(4): A(f"v_cvt_pk_bf16_f32 v{32+k}, v{32+2*k}, v{33+2*k}")
    A(f"ds_write_b32 v3, v40 offset:{MX}")
    A(f"ds_write_b128 v2, v[32:35] offset:{PX}")
    set_flag(3)
    wait_ge(FL_A, 3)
    stamp(6)
    A(f"ds_read_b128 v[40:43], v1 offset:{MX}")
    for w in range(4): A(f"ds_read_b128 v[{16+4*w}:{19+4*w}], v1 offset:{PX+w*1024}")
    A("s_waitcnt lgkmcnt(4)")
    A("v_max3_f32 v36, v40, v41, v42")
    A("v_max_f32 v36, v36, v43")
    for w in range(4): A(f"v_sub_f32 v{40+w}, v{40+w}, v36")
    for w in range(4): A(f"v_exp_f32 v{40+w}, v{40+w}")
    A("s_waitcnt lgkmcnt(0)")
    for w in range(4): A(f"v_mfma_f32_16x16x32_bf16 v[{48+4*w}:{51+4*w}], v[44:47], v[{16+4*w}:{19+4*w}], 0")
    A("s_cmp_lt_u32 s5, 2")
    A("s_cbranch_scc1 L_noflag4")
    set_flag(4)
    A("L_noflag4:")
    A("s_and_b32 s7, s4, 63")
    A("s_cmp_eq_u32 s5, 2")
    A("s_cbranch_scc0 L_noml")
    A("s_nop 4")
    A("v_mul_f32 v37, v40, v48")
    for w in range(1, 4): A(f"v_fmac_f32 v37, v{40+w}, v{48+4*w}")
    A("v_mov_b32 v38, s56")
    A("v_mov_b32 v39, s56")
    A("s_lshl_b32 s6, s61, 9")
    A("s_add_u32 s6, s6, s7")
    A("s_lshl_b32 s6, s6, 4")
    A(f"s_add_u32 s6, s6, {ML}")
    A("s_mov_b64 exec, 0xff")
    A("buffer_store_dwordx4 v[36:39], v13, s[12:15], s6 offen sc1")
    A("s_mov_b64 exec, -1")
    A("L_noml:")
    A("s_lshl_b32 s6, s61, 5")
    A("s_add_u32 s6, s6, s5")
    A("s_lshl_b32 s6, s6, 6")
    A("s_add_u32 s6, s6, s7")
    A("s_lshl_b32 s6, s6, 7")
    A(f"s_add_u32 s6, s6, {OP}")
    wait_ge(FL_L, 24)
    stamp(7)
    for kb in range(4):
        for dt in range(2):
            for hh in range(2):
                r = 48 + 8*kb + 4*dt + 2*hh
                A(f"ds_read_b64_tr_b16 v[{r}:{r+1}], v{14+dt} offset:{kb*8192+hh*4096}")
    for kb in range(4):
        for dt in range(2):
            A(f"s_waitcnt lgkmcnt({14-4*kb-2*dt})")
            r = 48 + 8*kb + 4*dt; d = 80 + 8*kb + 4*dt
            A(f"v_mfma_f32_16x16x32_bf16 v[{d}:{d+3}], v[{r}:{r+3}], v[{16+4*kb}:{19+4*kb}], 0")
    for kb in range(4):
        for k in range(4): A(f"v_cndmask_b32 v{80+8*kb+k}, v{80+8*kb+k}, v{84+8*kb+k}, s[98:99]")
        for k in range(4):
            if kb == 0: A(f"v_mul_f32 v{32+k}, v40, v{80+k}")
            else: A(f"v_fmac_f32 v{32+k}, v{40+kb}, v{80+8*kb+k}")
    tag4(32, 32)
    A("buffer_store_dwordx4 v[32:35], v12, s[12:15], s6 offen sc1")
    stamp(8)
    A("s_cmp_eq_u32 s5, 2")
    A("s_cbranch_scc1 L_fin")
    A("s_cmp_eq_u32 s5, 3")
    A("s_cbranch_scc1 L_final")
    A("s_and_b32 s6, s4, 0xfe")
    A("s_add_u32 s6, s6, s5")
    A("s_lshl_b32 s6, s6, 12")
    A(f"s_add_u32 s96, s6, {OP}")
    A("s_lshr_b32 s6, s4, 3")
    A("s_lshl1_add_u32 s6, s6, s5")
    A("s_lshl_b32 s6, s6, 9")
    A(f"s_add_u32 s97, s6, {ML}")
    A("v_lshrrev_b32 v2, 3, v0")
    A("v_lshlrev_b32 v2, 4, v2")
    A("v_lshl_add_u32 v3, v4, 2, v5")
    if stag:
        A("s_bfe_u32 s6, s4, 0x30001")
        A("v_xor_b32 v3, s6, v3")
    A("v_lshlrev_b32 v3, 2, v3")
    A("s_lshl_b32 s6, s5, 7")
    A("v_add_u32 v3, s6, v3")
    wait_ge(FL_L, trig_o)
    stamp(9)
    l = lab("op"); poll_head(l)
    for i in range(4): A(f"buffer_load_dwordx4 v[{48+4*i}:{51+4*i}], v2, s[12:15], s97 offen offset:{i*128} sc1")
    for i in range(4): A(f"buffer_load_dwordx4 v[{16+4*i}:{19+4*i}], v1, s[12:15], s96 offen offset:{i*1024} sc1")
    A("s_waitcnt vmcnt(4)")
    for i in range(4): A(f"v_xor_b32 v{50+4*i}, s56, v{50+4*i}")
    A("v_max3_f32 v36, v48, v52, v56")
    A("v_or3_b32 v33, v50, v54, v58")
    A("v_max_f32 v36, v36, v60")
    allred(36, 37, "v_max_f32", (8,))
    for i in range(4): A(f"v_sub_f32 v{40+i}, v{48+4*i}, v36")
    for i in range(4): A(f"v_exp_f32 v{40+i}, v{40+i}")
    A("v_mul_f32 v36, v40, v49")
    for i in range(1, 4): A(f"v_fmac_f32 v36, v{40+i}, v{49+4*i}")
    allred(36, 37, "v_add_f32", (8,))
    A("v_rcp_f32 v36, v36")
    A("s_waitcnt vmcnt(0)")
    untag([16, 20, 24, 28], 32)
    A("v_or3_b32 v32, v32, v33, v62")
    poll_tail(l, 32)
    stamp(10)
    for k in range(4): A(f"v_mul_f32 v{16+k}, v40, v{16+k}")
    for i in range(1, 4):
        for k in range(4): A(f"v_fmac_f32 v{16+k}, v{40+i}, v{16+4*i+k}")
    tred4(16, (8,))
    A("v_mul_f32 v16, v16, v36")
    A("v_cvt_pk_bf16_f32 v16, v16, v16")
    A(f"ds_write_b32 v3, v16 offset:{OA}")
    set_flag(4)
    stamp(11)
    A("s_branch L_fin")
    A("L_final:")
    A("v_lshrrev_b32 v2, 1, v0")
    A(f"v_mul_u32_u24 v2, {PSTR}, v2")
    A("v_and_b32 v3, 1, v0")
    A("v_lshl_add_u32 v2, v3, 4, v2")
    A("s_lshl_b32 s6, s4, 5")
    A("v_add_u32 v2, s6, v2")
    A(f"s_mov_b32 s6, {ZP}")
    A(f"s_mov_b32 s60, {SP}"); A(f"s_mov_b32 s61, {SP+32*PSTR}"); A(f"s_mov_b32 s62, {SP+64*PSTR}"); A(f"s_mov_b32 s63, {SP+96*PSTR}")
    A("v_lshlrev_b32 v118, 16, v118")
    A("v_lshlrev_b32 v119, 16, v119")
    wait_ge(FL_M, 4)
    l = lab("zp"); poll_head(l)
    A("buffer_load_dwordx4 v[16:19], v2, s[12:15], s6 offen sc1")
    A("s_waitcnt vmcnt(0)")
    untag([16], 32)
    poll_tail(l, 32)
    stamp(9)
    tred4(16, (8, 4, 2))
    rne(16, 16)
    A("v_add_f32 v16, v16, v119")
    rne(16, 16)
    A(f"v_mul_f32 v17, {f32(-math.log2(math.e))}, v16")
    A("v_exp_f32 v17, v17")
    A("v_add_f32 v17, 1.0, v17")
    A("v_rcp_f32 v17, v17")
    A("v_mul_f32 v40, v16, v17")
    rne(40, 40)
    wait_ge(FL_L, 64)
    stamp(10)
    l = lab("sp"); poll_head(l)
    for i in range(4): A(f"buffer_load_dwordx4 v[{16+4*i}:{19+4*i}], v2, s[12:15], s{60+i} offen sc1")
    A("s_waitcnt vmcnt(0)")
    untag([16, 20, 24, 28], 32)
    poll_tail(l, 32)
    A("v_pk_add_f32 v[16:17], v[16:17], v[20:21]")
    A("v_pk_add_f32 v[18:19], v[18:19], v[22:23]")
    A("v_pk_add_f32 v[24:25], v[24:25], v[28:29]")
    A("v_pk_add_f32 v[26:27], v[26:27], v[30:31]")
    A("v_pk_add_f32 v[16:17], v[16:17], v[24:25]")
    A("v_pk_add_f32 v[18:19], v[18:19], v[26:27]")
    tred4(16, (8, 4, 2))
    rne(16, 16)
    A("v_mul_f32 v16, v16, v40")
    rne(16, 16)
    A("v_add_f32 v16, v16, v118")
    A("v_cvt_pk_bf16_f32 v16, v16, v16")
    A("s_mov_b32 exec_lo, 0x30003")
    A("s_mov_b32 exec_hi, 0x30003")
    A(f"buffer_store_short v16, v117, s[48:51], 0 offen {outflag}")
    stamp(11)
    if probe is not None:
        A("s_waitcnt lgkmcnt(0)")
        if prole == 'A':
            A(f"s_sub_u32 s6, s{64+2*probe}, s64")
        else:
            A("ds_read_b32 v20, v127 offset:52")
            A("s_waitcnt lgkmcnt(0)")
            A("v_readfirstlane_b32 s6, v20")
        A("s_min_u32 s6, s6, 3000")
        A(f"s_mul_i32 s6, s6, {pmul}")
        if pwg is not None:
            A(f"s_cmp_eq_u32 s4, {pwg}")
            A("s_cselect_b32 s6, s6, 0")
        A("L_probe:")
        A("s_memrealtime s[96:97]")
        A("s_waitcnt lgkmcnt(0)")
        A("s_sub_u32 s7, s96, s86")
        A("s_cmp_lt_u32 s7, s6")
        A("s_cbranch_scc1 L_probe")
    A("s_cmp_eq_u32 s4, 0")
    A("s_cbranch_scc0 L_fin")
    A("s_mov_b64 exec, 1")
    A("v_mov_b32 v17, s56")
    A("buffer_store_dword v17, v127, s[12:15], 0 offen sc1")
    A("L_fin:")
    if stamps and probe is None:
        A("s_mov_b64 exec, 1")
        A("s_waitcnt vmcnt(0) lgkmcnt(0)")
        A("s_mul_i32 s6, s2, 12")
        A("s_add_u32 s6, s6, s3")
        A(f"s_mul_i32 s6, s6, {NST*8}")
        A(f"s_add_u32 s6, s6, {128<<20}")
        for i in range(NST):
            A(f"v_mov_b32 v4, s{64+2*i}"); A(f"v_mov_b32 v5, s{65+2*i}")
            A(f"buffer_store_dwordx2 v[4:5], v127, s[12:15], s6 offen offset:{8*i}")
            A("s_nop 1")
    A("L_bail:")
    A("L_end:")
    A("s_endpgm")
    A('.section .rodata,"a"'); A(".p2align 6")
    A(f".amdhsa_kernel {KN}_kernel")
    for d in ("next_free_vgpr 128", "next_free_sgpr 102", "accum_offset 128", "group_segment_fixed_size 0", "kernarg_size 104",
              "user_sgpr_count 2", "user_sgpr_kernarg_segment_ptr 1", "system_sgpr_workgroup_id_x 1"):
        L.append("  .amdhsa_" + d)
    A(".end_amdhsa_kernel")
    lines = []
    for x in L: lines.extend(x.split("\n"))
    if stamps:
        i = next(i for i, x in enumerate(lines) if "s_memrealtime s[64:65]" in x)
        lines[i+1:i+1] = [f"    s_mov_b64 s[{64+2*k}:{65+2*k}], 0" for k in range(1, NST)]
    return "\n".join(pad(lines)) + "\n"

if __name__ == "__main__":
    import argparse, ast
    out = sys.argv[1]
    kw = {}
    for a in sys.argv[2:]:
        k, v = a.split("=")
        try: v = ast.literal_eval(v)
        except Exception: pass
        kw[k] = v
    open(out, "w").write(gen(**kw))
```

```python
import sys, math, struct
from asmlib import pad
KN = "recurrent_scan__sliding_block_cached__mixer_channel_mlp__decode"

def f32(x): return "0x%08x" % struct.unpack("<I", struct.pack("<f", x))[0]

QP = 0x040000; HP = 0x080000; OP = 0x100000; SP = 0x200000; ZP = 0x320000
PSTR = 8320
WS_USED = 0x400000
FL_L = 0; FL_A = 16; FL_M = 32; TAGW = 48
OA = 64
GX = 1024 + 64 + 64
HL = 512; HSTR = 288
MX = 1280
QL = 2304; QSTR = 272
XN = 4608; XSTR = 2112
YN = XN + 2 * XSTR
PX = 13056
XR = 17152
GX = 21248
R0 = 21504; KB = R0 + 32768; VB = KB + 32768; W1B = VB + 32768
LDS_BYTES = W1B + 32768
assert R0 % 256 == 0

def gen(stamps=False, order="Y", W0=9, W1=6, nW0=0, W2=6, nW2=48, tq=17, to=38, th=25, codepf=True, outflag="sc1",
        header=True, probe=None, prole='A', pwg=None, pmul=1, cut=0, tlbpf=True, sq=True, so=True, sh=True, sz=True, ss=0,
        slp=1, nt="nt", g1="", spinprio=True, nsq=1, nso=2, nsh=2, nsz=2, tlbj=7, cpj=None, rot=0, dummy=None):
    if probe is not None: stamps = True
    L = []
    def A(s=""): L.append(("    " + s) if not s.endswith(":") and not s.startswith(".") else s)
    uid = [0]
    def lab(n): uid[0] += 1; return f"L_{n}_{uid[0]}"
    NST = 12
    regs = {"Y": ["wq", "w1", "k", "v", "w2", "wo"], "X": ["wq", "k", "v", "w1", "w2", "wo"], "Z": ["wq", "k", "w1", "v", "w2", "wo"]}[order]
    land = {}; c = 1
    for r in regs:
        c += 7 if r == "w2" else 8; land[r] = c
    NLOAD = c
    def stamp(i):
        if stamps: A(f"s_memrealtime s[{64+2*i}:{65+2*i}]")
    def mksrd(d, ptr, size):
        A(f"s_mov_b64 s[{d}:{d+1}], s[{ptr}:{ptr+1}]"); A(f"s_mov_b32 s{d+2}, {size}"); A(f"s_mov_b32 s{d+3}, 0x20000")
    def wait_ge(fl, th_, also=(), t=120):
        l = lab("w")
        if spinprio: A("s_setprio 0")
        A(f"{l}:")
        A(f"ds_read_b128 v[{t}:{t+3}], v127 offset:{fl}")
        for x in also: A(x)
        A("s_sub_u32 s58, s58, 1")
        A("s_cbranch_scc1 L_bail")
        A(f"s_waitcnt lgkmcnt({0 if stamps else len(also)})")
        A(f"v_min3_u32 v{t}, v{t}, v{t+1}, v{t+2}")
        A(f"v_min_u32 v{t}, v{t}, v{t+3}")
        A(f"v_cmp_gt_u32 vcc, {th_}, v{t}")
        A(f"s_cbranch_vccnz {l}")
        if spinprio: A("s_setprio 2")
    def set_flag(val):
        A(f"v_mov_b32 v125, {val}")
        A("s_mov_b64 exec, 1")
        A("ds_write_b32 v126, v125")
        A("s_mov_b64 exec, -1")
    def tag_from(v):
        A(f"v_readfirstlane_b32 s56, v{v}")
        A("v_mov_b32 v124, 0xffffff00")
        A("s_and_b32 s52, s56, 0xff")
        A("s_bfe_u32 s53, s56, 0x80008")
        A("s_bfe_u32 s54, s56, 0x80010")
        A("s_lshr_b32 s55, s56, 24")
    def tag4(d, s, n=4):
        for k in range(n): A(f"v_and_or_b32 v{d+k}, v{s+k}, v124, s{52+k}")
    def untag(bases, bad, n=4):
        rs_ = [b + k for b in bases for k in range(n)]
        for b in bases:
            for k in range(n): A(f"v_xor_b32 v{b+k}, s{52+k}, v{b+k}")
        A(f"v_or3_b32 v{bad}, v{rs_[0]}, v{rs_[1]}, v{rs_[2]}")
        i = 3
        while i < len(rs_):
            if i + 1 < len(rs_): A(f"v_or3_b32 v{bad}, v{bad}, v{rs_[i]}, v{rs_[i+1]}"); i += 2
            else: A(f"v_or_b32 v{bad}, v{bad}, v{rs_[i]}"); i += 1
        A(f"v_and_b32 v{bad}, 0xff, v{bad}")
    def sumtree(bases):
        bases = list(bases)
        while len(bases) > 1:
            nb = []
            for i in range(0, len(bases), 2):
                a, b = bases[i], bases[i+1]
                A(f"v_pk_add_f32 v[{a}:{a+1}], v[{a}:{a+1}], v[{b}:{b+1}]")
                A(f"v_pk_add_f32 v[{a+2}:{a+3}], v[{a+2}:{a+3}], v[{b+2}:{b+3}]")
                nb.append(a)
            bases = nb
    def allred(v, t, op, rors):
        for sw in ("32", "16"):
            A(f"v_mov_b32 v{t}, v{v}")
            A(f"v_permlane{sw}_swap_b32 v{v}, v{t}")
            A(f"{op} v{v}, v{v}, v{t}")
        for r in rors:
            A(f"{op}_dpp v{v}, v{v}, v{v} row_ror:{r} row_mask:0xf bank_mask:0xf")
    def tred4(a, rors):
        A(f"v_permlane32_swap_b32 v{a}, v{a+2}")
        A(f"v_permlane32_swap_b32 v{a+1}, v{a+3}")
        A(f"v_add_f32 v{a}, v{a}, v{a+2}")
        A(f"v_add_f32 v{a+1}, v{a+1}, v{a+3}")
        A(f"v_permlane16_swap_b32 v{a}, v{a+1}")
        A(f"v_add_f32 v{a}, v{a}, v{a+1}")
        for r in rors:
            A(f"v_add_f32_dpp v{a}, v{a}, v{a} row_ror:{r} row_mask:0xf bank_mask:0xf")
    def rne(d, s):
        A(f"v_cvt_pk_bf16_f32 v{d}, v{s}, v{s}"); A(f"v_and_b32 v{d}, 0xffff0000, v{d}")
    def poll_tail(l, bad):
        A(f"v_cmp_ne_u32 vcc, 0, v{bad}")
        A(f"s_cbranch_vccnz {l}")
    gw = [1]
    def poll_head(l):
        A(f"{l}:")
        if stamps: A(f"s_add_u32 s100, s100, {gw[0]*100}")
        A("s_sub_u32 s58, s58, 16")
        A("s_cbranch_scc1 L_bail")
    def gather(fn, mid=None, dbg=None):
        l = lab("g"); l2 = lab("g")
        if g1 != "sc1" or mid:
            fn(g1)
            if mid: mid()
            if dbg and stamps:
                stamp(dbg[0]); A("s_waitcnt vmcnt(7)"); stamp(dbg[1]); A("s_waitcnt vmcnt(0)"); stamp(dbg[2])
            A(f"s_branch {l2}")
        poll_head(l)
        fn("sc1")
        A(f"{l2}:")
        A("s_waitcnt vmcnt(0)")
        return l
    def gsum(fn, bases, bad, mid=None, dbg=None):
        l = lab("g"); l2 = lab("g")
        if g1 != "sc1" or mid:
            fn(g1)
            if mid: mid()
            if dbg and stamps:
                stamp(dbg[0]); A(f"s_waitcnt vmcnt({len(bases)-1})"); stamp(dbg[1]); A("s_waitcnt vmcnt(0)"); stamp(dbg[2])
            A(f"s_branch {l2}")
        poll_head(l)
        fn("sc1")
        A(f"{l2}:")
        a = bases[0]
        for i, b in enumerate(bases):
            A(f"s_waitcnt vmcnt({len(bases)-1-i})")
            for k in range(4): A(f"v_xor_b32 v{b+k}, s{52+k}, v{b+k}")
            if i == 0:
                A(f"v_or3_b32 v{bad}, v{b}, v{b+1}, v{b+2}"); A(f"v_or_b32 v{bad}, v{bad}, v{b+3}")
            else:
                A(f"v_or3_b32 v{bad}, v{bad}, v{b}, v{b+1}"); A(f"v_or3_b32 v{bad}, v{bad}, v{b+2}, v{b+3}")
                A(f"v_pk_add_f32 v[{a}:{a+1}], v[{a}:{a+1}], v[{b}:{b+1}]")
                A(f"v_pk_add_f32 v[{a+2}:{a+3}], v[{a+2}:{a+3}], v[{b+2}:{b+3}]")
        A(f"v_cmp_ne_u32_sdwa vcc, v{bad}, v127 src0_sel:BYTE_0 src1_sel:DWORD")
        A(f"s_cbranch_vccnz {l}")
    def gemv64(xb, rb, rs_sreg, need_m, need_l, st0):
        A("v_lshrrev_b32 v1, 2, v0")
        A("v_bfe_u32 v2, v0, 3, 2")
        A("v_xor_b32 v2, s5, v2")
        A("v_lshlrev_b32 v2, 5, v2")
        A("v_lshl_add_u32 v2, v1, 7, v2")
        A("v_and_b32 v3, 3, v0")
        A("v_lshl_add_u32 v2, v3, 3, v2")
        A(f"v_add_u32 v2, {rb}, v2")
        A("v_and_b32 v6, 1, v0")
        A(f"v_mul_u32_u24 v3, {XSTR}, v6")
        A("v_lshrrev_b32 v4, 4, v0")
        A("v_lshl_add_u32 v3, v4, 3, v3")
        A(f"s_lshl_b32 s6, s{rs_sreg}, 9")
        A(f"s_add_u32 s6, s6, {xb}")
        A("v_add_u32 v3, s6, v3")
        A("v_lshlrev_b32 v5, 14, v6")
        A("v_lshl_add_u32 v5, v4, 4, v5")
        A("s_barrier")
        if cut == 1: A("s_branch L_fin")
        wait_ge(FL_M, need_m, [f"ds_read_b32 v114, v127 offset:{TAGW}"] +
                [f"ds_read2_b64 v[{16+4*kb}:{19+4*kb}], v3 offset0:{kb*8} offset1:{kb*8+4}" for kb in range(8)])
        stamp(st0)
        wait_ge(FL_L, need_l)
        stamp(st0 + 1)
        for kb in range(8):
            A(f"ds_read_b64_tr_b16 v[{48+4*kb}:{49+4*kb}], v2 offset:{kb*4096}")
            A(f"ds_read_b64_tr_b16 v[{50+4*kb}:{51+4*kb}], v2 offset:{kb*4096+2048}")
        tag_from(114)
        for kb in range(8):
            A(f"s_waitcnt lgkmcnt({14-2*kb})")
            c = "0" if kb < 2 else f"v[{8+4*(kb&1)}:{11+4*(kb&1)}]"
            A(f"v_mfma_f32_16x16x32_bf16 v[{8+4*(kb&1)}:{11+4*(kb&1)}], v[{48+4*kb}:{51+4*kb}], v[{16+4*kb}:{19+4*kb}], {c}")
    def sentinel(soff, offs):
        l = lab("s"); l2 = lab("s")
        A(f"s_branch {l2}")
        A(f"{l}:")
        if slp: A(f"s_sleep {slp}")
        A(f"{l2}:")
        for i, o in enumerate(offs): A(f"s_buffer_load_dword s{88+i}, s[12:15], s{soff} offset:{o} glc")
        A("s_sub_u32 s58, s58, 16")
        A("s_cbranch_scc1 L_bail")
        A("s_waitcnt lgkmcnt(0)")
        for i in range(len(offs)): A(f"s_xor_b32 s{88+i}, s{88+i}, s52")
        for i in range(1, len(offs)): A(f"s_or_b32 s88, s88, s{88+i}")
        A("s_and_b32 s88, s88, 0xff")
        A(f"s_cbranch_scc1 {l}")
    def pwrite():
        l = lab("pw")
        A("s_waitcnt lgkmcnt(0)")
        A("s_cmp_eq_u32 s5, 0")
        A(f"s_cbranch_scc0 {l}")
        A(f"s_sub_u32 s7, s{64+2*probe}, s64")
        A("v_mov_b32 v123, s7")
        A("ds_write_b32 v127, v123 offset:52")
        A(f"{l}:")
    def traddr(d, base):
        A("v_lshrrev_b32 v1, 2, v0")
        A(f"v_and_b32 v{d}, 7, v1")
        A("s_lshl_b32 s6, s5, 1")
        A(f"v_xor_b32 v{d}, s6, v{d}")
        A(f"v_lshlrev_b32 v{d}, 5, v{d}")
        A(f"v_lshl_add_u32 v{d}, v1, 8, v{d}")
        A("v_and_b32 v1, 3, v0")
        A(f"v_lshl_add_u32 v{d}, v1, 3, v{d}")
        A(f"v_add_u32 v{d}, {base}, v{d}")
        A(f"v_xor_b32 v{d+1}, 32, v{d}")
    def gemv128(xb, rb, rs_sreg, need_m, need_l, st0, bstr):
        traddr(2, rb)
        A("v_and_b32 v6, 1, v0")
        A(f"v_mul_u32_u24 v4, {XSTR}, v6")
        A("v_lshrrev_b32 v7, 4, v0")
        A("v_lshl_add_u32 v4, v7, 3, v4")
        A(f"s_lshl_b32 s6, s{rs_sreg}, 8")
        A(f"s_add_u32 s6, s6, {xb}")
        A("v_add_u32 v4, s6, v4")
        A(f"v_mul_u32_u24 v5, {bstr}, v6")
        A("v_and_b32 v1, 2, v0")
        A("v_lshl_add_u32 v5, v1, 5, v5")
        A("v_lshl_add_u32 v5, v7, 4, v5")
        A("v_cmp_eq_u32 s[98:99], 2, v1")
        wait_ge(FL_M, need_m, [f"ds_read_b32 v114, v127 offset:{TAGW}"] +
                [f"ds_read2_b64 v[{16+4*kb}:{19+4*kb}], v4 offset0:{kb*8} offset1:{kb*8+4}" for kb in range(4)])
        stamp(st0)
        A("s_waitcnt lgkmcnt(0)")
        tag_from(114)
        wait_ge(FL_L, need_l)
        stamp(st0 + 1)
        for kb in range(4):
            for n in range(2):
                for hh in range(2):
                    r = 48 + 8*kb + 4*n + 2*hh
                    A(f"ds_read_b64_tr_b16 v[{r}:{r+1}], v{2+n} offset:{kb*8192+hh*4096}")
        for kb in range(4):
            for n in range(2):
                A(f"s_waitcnt lgkmcnt({14-4*kb-2*n})")
                r = 48 + 8*kb + 4*n; d = 8 + 4*n
                A(f"v_mfma_f32_16x16x32_bf16 v[{d}:{d+3}], v[{r}:{r+3}], v[{16+4*kb}:{19+4*kb}], {'0' if kb == 0 else f'v[{d}:{d+3}]'}")
    def sel_tag_store(voff, soff):
        for k in range(4): A(f"v_cndmask_b32 v{8+k}, v{8+k}, v{12+k}, s[98:99]")
        tag4(8, 8)
        A("s_mov_b32 exec_lo, 0xf000f")
        A("s_mov_b32 exec_hi, 0xf000f")
        A(f"buffer_store_dwordx4 v[8:11], v{voff}, s[12:15], s{soff} offen sc1")
        A("s_mov_b64 exec, -1")
    def kvbase(d):
        A("s_bfe_u32 s6, s4, 0x10005")
        A("s_lshr_b32 s7, s4, 6")
        A("s_lshl2_add_u32 s6, s6, s7")
        A("s_lshl_b32 s6, s6, 8")
        A("s_and_b32 s7, s4, 31")
        A("s_add_u32 s6, s6, s7")
        A("s_add_u32 s6, s6, 224")
        A(f"s_lshl_b32 s{d}, s6, 15")

    if header:
        L.append(open("cdna_kernels/%s.s.ref" % KN).read().split("; Override launch")[0].rstrip())
    L.append(f"; @launch grid=(256,1,1) block=(768,1,1) lds={LDS_BYTES}")
    A('.amdgcn_target "amdgcn-amd-amdhsa--gfx950"')
    A(".text")
    A(f".globl {KN}_kernel")
    A(".p2align 8")
    A(f".type {KN}_kernel,@function")
    A(f"{KN}_kernel:")
    stamp(0)
    A("s_load_dwordx16 s[16:31], s[0:1], 0")
    A("s_load_dwordx8 s[32:39], s[0:1], 64")
    A("s_load_dwordx2 s[12:13], s[0:1], 96")
    A("v_lshrrev_b32 v1, 6, v0")
    A("s_cmp_ge_u32 s2, 256")
    A("s_cbranch_scc1 L_end")
    A("v_readfirstlane_b32 s3, v1")
    A("v_and_b32 v0, 63, v0")
    if rot:
        A(f"s_add_u32 s4, s2, {rot}")
        A("s_and_b32 s4, s4, 7")
    else: A("s_and_b32 s4, s2, 7")
    A("s_lshl_b32 s4, s4, 5")
    A("s_lshr_b32 s6, s2, 3")
    A("s_or_b32 s4, s4, s6")
    A("s_and_b32 s5, s3, 3")
    A("s_cmp_ge_u32 s3, 4")
    A("s_cbranch_scc1 L_notL")
    A("v_lshrrev_b32 v1, 3, v0")
    A("v_and_b32 v2, 6, v1")
    A("v_xor_b32 v2, v0, v2")
    A("v_and_b32 v2, 7, v2")
    A("v_lshlrev_b32 v2, 4, v2")
    A("v_lshl_add_u32 v3, v1, 13, v2")
    A("v_lshlrev_b32 v5, 4, v0")
    A("s_bfe_u32 s6, s4, 0x20004")
    A("s_lshl2_add_u32 s6, s6, s5")
    A("s_lshl_b32 s6, s6, 19")
    A("s_lshr_b32 s7, s4, 6")
    A("s_and_b32 s57, s4, 15")
    A("s_lshl4_add_u32 s7, s7, s57")
    A("s_lshl_b32 s7, s7, 7")
    A("s_add_u32 s60, s6, s7")
    A("s_lshl_b32 s59, s5, 13")
    A("s_lshl_b32 s7, s5, 10")
    A(f"s_add_u32 m0, s7, {XR}")
    A("s_mov_b32 s10, 4096"); A("s_mov_b32 s11, 0x20000"); A("s_mov_b32 s42, 8388608"); A("s_mov_b32 s43, 0x20000")
    A("s_waitcnt lgkmcnt(0)")
    A("s_mov_b64 s[8:9], s[16:17]")
    A("s_mov_b64 s[40:41], s[22:23]")
    A("buffer_load_dwordx4 v5, s[8:11], s7 offen lds")
    cnt = [1]
    ticks = sorted(set([land[r] for r in regs[:-1]] + [t for t in (tq, to, th) if t]))
    ticked = set()
    def Wn(n): return W0 if n <= W0 + nW0 else (W1 if n < nW2 else W2)
    barr = [False]
    def pre_issue():
        n = cnt[0]; w = Wn(n)
        if n >= w:
            A(f"s_waitcnt vmcnt({w-1})")
            if not barr[0]: A("s_barrier"); barr[0] = True
            landed = n - w + 1
            todo = [t for t in ticks if t <= landed and t not in ticked]
            if todo:
                set_flag(max(todo)); ticked.update(todo)
        cnt[0] += 1
    def strided(n, va, sr, sb, step, m0init, alt=1):
        for i in range(n):
            pre_issue()
            if i == 0: A(m0init)
            if i == 4: A("s_add_u32 m0, m0, 4096")
            A(f"buffer_load_dwordx4 v{va+(i&alt)}, s[{sr}:{sr+3}], s{sb} offen offset:{(i&3)*1024} {nt} lds")
            if i < n - 1: A(f"s_add_u32 s{sb}, s{sb}, {step - 1024 if (i & 3) != 3 else step + 3072}")
    assert W0 >= 9
    strided(8, 3, 40, 60, 65536, f"s_add_u32 m0, s59, {R0}", 0)
    stamp(1)
    A("s_branch L_Lmain")
    A("L_notL:")
    A("v_mov_b32 v127, 0")
    A("s_setprio 2")
    A("s_cmp_eq_u32 s3, 10")
    A("s_cbranch_scc0 L_noe")
    A("s_waitcnt lgkmcnt(0)")
    A("s_load_dword s57, s[12:13], 0")
    A("L_noe:")
    A("s_cmp_eq_u32 s3, 4")
    A("s_cbranch_scc0 L_noz")
    A("v_lshlrev_b32 v2, 2, v0")
    A("s_mov_b64 exec, 0xfff")
    A("ds_write_b32 v2, v127")
    A("s_mov_b64 exec, -1")
    A("s_waitcnt lgkmcnt(0)")
    A("L_noz:")
    A(f"s_mov_b32 s14, {WS_USED if not stamps else 0x10000000}"); A("s_mov_b32 s15, 0x20000")
    A("s_mov_b32 s58, 0x100000")
    A("s_lshl_b32 s6, s3, 2")
    A("v_mov_b32 v126, s6")
    A("s_cmp_lt_u32 s3, 8")
    A("s_cbranch_scc1 L_A")
    A("v_lshlrev_b32 v1, 4, v0")
    A("s_lshl_b32 s6, s5, 11")
    A("v_add_u32 v2, s6, v1")
    A(f"s_mul_i32 s6, s5, {XSTR}")
    A(f"s_add_u32 s6, s6, {XN}")
    A("v_add_u32 v1, s6, v1")
    A("s_mov_b32 s60, 1")
    A("s_cmp_lt_u32 s5, 2")
    A("s_cbranch_scc1 L_ln")
    if tlbpf:
        A("s_and_b32 s7, s4, 31")
        A("s_lshl2_add_u32 s6, s7, s5")
        if tlbj is None: A("s_cmp_eq_u32 s5, 3")
        else: A(f"s_cmp_eq_u32 s6, {tlbj*4+3}")
        A("s_cbranch_scc0 L_notlb")
        A("s_waitcnt lgkmcnt(0)")
        kvbase(60)
        A("s_lshr_b32 s63, s4, 5")
        A(f"s_mul_i32 s61, s63, {128*7168}")
        A("s_lshl_b32 s63, s63, 20")
        A("s_lshl_b32 s7, s4, 3")
        A("s_add_u32 s6, s7, 0x3f0000")
        tl = [f"s_load_dword s88, s[28:29], s61", f"s_load_dword s89, s[28:29], s61 offset:{128*7168-4}"]
        tk = ["s_load_dword s90, s[18:19], s60", "s_load_dword s91, s[20:21], s60"]
        for x in (tl + tk if order == "Y" else tk + tl): A(x)
        A("s_load_dword s92, s[32:33], s61")
        A(f"s_load_dword s93, s[32:33], s61 offset:{128*7168-4}")
        A("s_load_dword s94, s[24:25], s63")
        A("s_load_dword s95, s[30:31], s7")
        A("s_load_dword s96, s[12:13], s6")
        A("s_load_dword s97, s[36:37], s7")
        A("s_load_dword s59, s[34:35], s7")
        A("L_notlb:")
    A("s_barrier")
    if cut == 1: A("s_branch L_fin")
    A("s_cmp_eq_u32 s5, 2")
    A("s_cbranch_scc0 L_notag")
    A("s_waitcnt lgkmcnt(0)")
    A("s_mul_i32 s57, s57, 1664525")
    A("s_add_u32 s57, s57, 1013904223")
    A("v_mov_b32 v2, s57")
    A(f"ds_write_b32 v127, v2 offset:{TAGW}")
    A("L_notag:")
    set_flag(2)
    A("s_branch L_Mmain")
    A("L_ln:")
    A("s_waitcnt lgkmcnt(0)")
    A("s_setprio 3")
    A("s_barrier")
    if cut == 1: A("s_branch L_fin")
    A(f"ds_read_b128 v[4:7], v2 offset:{XR}")
    A(f"ds_read_b128 v[8:11], v2 offset:{XR+1024}")
    stamp(1)
    A("s_waitcnt lgkmcnt(0)")
    A("L_lnloop:")
    for k in range(8):
        A(f"v_lshlrev_b32 v{16+2*k}, 16, v{4+k}")
        A(f"v_and_b32 v{17+2*k}, 0xffff0000, v{4+k}")
    for k in range(4): A(f"v_pk_add_f32 v[{32+2*k}:{33+2*k}], v[{16+4*k}:{17+4*k}], v[{18+4*k}:{19+4*k}]")
    A("v_pk_add_f32 v[32:33], v[32:33], v[34:35]")
    A("v_pk_add_f32 v[36:37], v[36:37], v[38:39]")
    A("v_pk_add_f32 v[32:33], v[32:33], v[36:37]")
    A("v_add_f32 v12, v32, v33")
    allred(12, 13, "v_add_f32", (8, 4, 2, 1))
    A(f"v_mul_f32 v12, {f32(1/1024)}, v12")
    for k in range(8): A(f"v_pk_add_f32 v[{32+2*k}:{33+2*k}], v[{16+2*k}:{17+2*k}], v[12:13] op_sel_hi:[1,0] neg_lo:[0,1] neg_hi:[0,1]")
    A("v_pk_mul_f32 v[14:15], v[32:33], v[32:33]")
    A("v_pk_mul_f32 v[48:49], v[34:35], v[34:35]")
    for k in range(2, 8, 2):
        A(f"v_pk_fma_f32 v[14:15], v[{32+2*k}:{33+2*k}], v[{32+2*k}:{33+2*k}], v[14:15]")
        A(f"v_pk_fma_f32 v[48:49], v[{34+2*k}:{35+2*k}], v[{34+2*k}:{35+2*k}], v[48:49]")
    A("v_pk_add_f32 v[14:15], v[14:15], v[48:49]")
    A("v_add_f32 v14, v14, v15")
    rne(12, 12)
    for k in range(8): A(f"v_pk_add_f32 v[{32+2*k}:{33+2*k}], v[{16+2*k}:{17+2*k}], v[12:13] op_sel_hi:[1,0] neg_lo:[0,1] neg_hi:[0,1]")
    allred(14, 15, "v_add_f32", (8, 4, 2, 1))
    A(f"v_mul_f32 v14, {f32(1/1024)}, v14")
    rne(14, 14)
    A(f"v_add_f32 v14, {f32(1e-5)}, v14")
    rne(14, 14)
    A("v_sqrt_f32 v14, v14")
    for k in range(8): A(f"v_cvt_pk_bf16_f32 v{4+k}, v{32+2*k}, v{33+2*k}")
    rne(14, 14)
    A("v_rcp_f32 v14, v14")
    for k in range(8):
        A(f"v_lshlrev_b32 v{16+2*k}, 16, v{4+k}")
        A(f"v_and_b32 v{17+2*k}, 0xffff0000, v{4+k}")
    for k in range(8): A(f"v_pk_mul_f32 v[{16+2*k}:{17+2*k}], v[{16+2*k}:{17+2*k}], v[14:15] op_sel_hi:[1,0]")
    for k in range(8): A(f"v_cvt_pk_bf16_f32 v{4+k}, v{16+2*k}, v{17+2*k}")
    A("ds_write_b128 v1, v[4:7]")
    A("ds_write_b128 v1, v[8:11] offset:1024")
    set_flag("s60")
    A("s_setprio 1")
    A(f"v_add_u32 v1, {YN-XN}, v1")
    A("s_add_u32 s60, s60, 1")
    A("s_cmp_eq_u32 s60, 2")
    A("s_cbranch_scc1 L_lnloop")
    stamp(2)
    A("L_Mmain:")
    A("s_waitcnt lgkmcnt(0)")
    mksrd(40, 30, 7168)
    A("s_lshr_b32 s61, s4, 5")
    A("s_lshr_b32 s62, s4, 3")
    A("s_and_b32 s59, s4, 31")
    A("s_add_u32 s7, s59, 4")
    A("s_lshr_b32 s7, s7, 3")
    A("s_sub_u32 s59, s59, s7")
    A("s_lshl2_add_u32 s63, s59, s5")
    A("s_lshl_b32 s63, s63, 7")
    A(f"s_mul_i32 s7, s61, {2*14336}")
    A("s_add_u32 s63, s63, s7")
    A(f"s_add_u32 s63, s63, {HP}")
    gemv128(YN, W1B, 61, 2, land["w1"], 3, 14336)
    A("s_and_b32 s59, s4, 7")
    A("s_cmp_eq_u32 s59, 3")
    A("s_cbranch_scc1 L_nohp")
    sel_tag_store(5, 63)
    A("L_nohp:")
    stamp(5)
    A(f"v_add_u32 v2, {(R0 - W1B) & 0xffffffff}, v2")
    A("v_xor_b32 v3, 32, v2")
    A(f"v_mul_u32_u24 v4, {HSTR}, v6")
    A("v_lshl_add_u32 v4, v7, 3, v4")
    A(f"v_add_u32 v4, {HL}, v4")
    A("v_lshl_add_u32 v5, v1, 1, v7")
    A("v_lshlrev_b32 v5, 5, v5")
    A("v_lshl_add_u32 v5, v6, 4, v5")
    A(f"s_mul_i32 s6, s62, {PSTR}")
    A("s_and_b32 s59, s4, 7")
    A("s_lshl2_add_u32 s7, s59, s5")
    A("s_lshl_b32 s7, s7, 8")
    A("s_add_u32 s6, s6, s7")
    A(f"s_add_u32 s63, s6, {ZP}")
    A("s_cmp_eq_u32 s5, 0")
    A("s_cbranch_scc1 L_hgather")
    set_flag(3)
    A("s_branch L_hdone")
    A("L_hgather:")
    A("v_and_b32 v90, 31, v0")
    A("v_min_u32 v90, 27, v90")
    A("s_mul_i32 s6, s62, 28")
    A("v_add_u32 v91, s6, v90")
    A("v_lshrrev_b32 v92, 5, v0")
    A("v_mul_u32_u24 v93, 14336, v92")
    A("v_lshl_add_u32 v93, v91, 4, v93")
    A("v_lshlrev_b32 v91, 3, v91")
    A(f"v_mul_u32_u24 v92, {HSTR}, v92")
    A("v_lshl_add_u32 v92, v90, 3, v92")
    A("s_and_b32 s7, s59, 1")
    A("s_mul_i32 s7, s7, 896")
    A("s_add_u32 s6, s6, s7")
    A("s_lshr_b32 s7, s59, 1")
    A("s_mul_i32 s7, s7, 7")
    A("s_add_u32 s6, s6, s7")
    A("s_lshl_b32 s60, s6, 4")
    if th: wait_ge(FL_L, th)
    if sh: sentinel(60, [HP + rs*28672 for rs in range(8)])
    stamp(6)
    A("buffer_load_dwordx2 v[94:95], v91, s[40:43], 0 offen")
    def hloads(f):
        for rs in range(8):
            A(f"s_mov_b32 s6, {HP + rs*28672}")
            A(f"buffer_load_dwordx4 v[{16+4*rs}:{19+4*rs}], v93, s[12:15], s6 offen {f}")
    gsum(hloads, list(range(16, 48, 4)), 112, None, (1, 2, 11))
    stamp(7)
    A("v_cvt_pk_bf16_f32 v100, v16, v17")
    A("v_cvt_pk_bf16_f32 v101, v18, v19")
    for k in range(2):
        A(f"v_lshlrev_b32 v{96+2*k}, 16, v{100+k}"); A(f"v_and_b32 v{97+2*k}, 0xffff0000, v{100+k}")
        A(f"v_lshlrev_b32 v{104+2*k}, 16, v{94+k}"); A(f"v_and_b32 v{105+2*k}, 0xffff0000, v{94+k}")
    A("v_pk_add_f32 v[96:97], v[96:97], v[104:105]")
    A("v_pk_add_f32 v[98:99], v[98:99], v[106:107]")
    A("v_cvt_pk_bf16_f32 v100, v96, v97")
    A("v_cvt_pk_bf16_f32 v101, v98, v99")
    for k in range(2):
        A(f"v_lshlrev_b32 v{96+2*k}, 16, v{100+k}"); A(f"v_and_b32 v{97+2*k}, 0xffff0000, v{100+k}")
    kk = -2.0 * math.sqrt(2.0 / math.pi) * math.log2(math.e)
    A(f"s_mov_b32 s6, {f32(kk*0.044715)}")
    A(f"v_mov_b32 v108, {f32(kk)}")
    for k in range(4): A(f"v_mul_f32 v{100+k}, v{96+k}, v{96+k}")
    for k in range(4): A(f"v_fma_f32 v{100+k}, v{100+k}, s6, v108")
    for k in range(4): A(f"v_mul_f32 v{100+k}, v{100+k}, v{96+k}")
    for k in range(4): A(f"v_exp_f32 v{100+k}, v{100+k}")
    for k in range(4): A(f"v_add_f32 v{100+k}, 1.0, v{100+k}")
    for k in range(4): A(f"v_rcp_f32 v{100+k}, v{100+k}")
    for k in range(4): A(f"v_mul_f32 v{96+k}, v{96+k}, v{100+k}")
    A("v_cvt_pk_bf16_f32 v100, v96, v97")
    A("v_cvt_pk_bf16_f32 v101, v98, v99")
    A(f"ds_write_b64 v92, v[100:101] offset:{HL}")
    set_flag(3)
    A("L_hdone:")
    hreads = [f"ds_read2_b64 v[{48+4*kb}:{51+4*kb}], v4 offset0:{kb*8} offset1:{kb*8+4}" for kb in range(3)] + ["ds_read_b64 v[60:61], v4 offset:192"]
    w2reads = lambda: [(A(f"ds_read_b64_tr_b16 v[{16+2*k}:{17+2*k}], v2 offset:{k*4096}"), A(f"ds_read_b64_tr_b16 v[{32+2*k}:{33+2*k}], v3 offset:{k*4096}")) for k in (6, 0, 1, 2, 3, 4, 5)]
    if order == "X":
        wait_ge(FL_L, land["w2"]); stamp(8); w2reads(); A("s_waitcnt lgkmcnt(0)"); wait_ge(FL_M, 3, hreads); stamp(9)
    else:
        wait_ge(FL_M, 3, hreads); stamp(9); A("s_waitcnt lgkmcnt(0)"); wait_ge(FL_L, land["w2"]); stamp(8); w2reads()
    A("s_waitcnt lgkmcnt(0)")
    A("v_mfma_f32_16x16x16_bf16 v[8:11], v[28:29], v[60:61], 0")
    A("v_mfma_f32_16x16x16_bf16 v[12:15], v[44:45], v[60:61], 0")
    for kb in range(3):
        A(f"v_mfma_f32_16x16x32_bf16 v[8:11], v[{16+4*kb}:{19+4*kb}], v[{48+4*kb}:{51+4*kb}], v[8:11]")
        A(f"v_mfma_f32_16x16x32_bf16 v[12:15], v[{32+4*kb}:{35+4*kb}], v[{48+4*kb}:{51+4*kb}], v[12:15]")
    sel_tag_store(5, 63)
    if probe is not None and prole == 'M': pwrite()
    set_flag(4)
    stamp(10)
    A("s_branch L_fin")

    A("L_Lmain:")
    A(f"s_mov_b32 s14, {WS_USED if not stamps else 0x10000000}"); A("s_mov_b32 s15, 0x20000")
    A("s_mov_b32 s58, 0x100000")
    A("v_mov_b32 v127, 0")
    A("s_lshl_b32 s57, s5, 2")
    A("v_mov_b32 v126, s57")
    A("s_setprio 3")
    A("v_lshrrev_b32 v1, 4, v0")
    A("v_lshlrev_b32 v2, 1, v1")
    A("v_xor_b32 v2, v0, v2")
    A("v_and_b32 v2, 15, v2")
    A("v_lshlrev_b32 v2, 4, v2")
    A("v_mul_u32_u24 v3, 7168, v1")
    A("v_add_u32 v3, v3, v2")
    A("v_xor_b32 v4, 0x80, v3")
    A("v_lshl_add_u32 v5, v1, 8, v2")
    A("v_xor_b32 v6, 0x80, v5")
    A("v_lshl_add_u32 v7, v1, 11, v2")
    A("s_and_b32 s57, s5, 1")
    A("s_lshl_b32 s57, s57, 7")
    A("v_xor_b32 v7, s57, v7")
    A("v_xor_b32 v8, 0x80, v7")
    kvbase(62)
    A("s_add_u32 s62, s62, s59")
    A("s_lshr_b32 s6, s4, 5")
    A("s_lshl2_add_u32 s6, s6, s5")
    A(f"s_mul_i32 s6, s6, {32*7168}")
    A("s_add_u32 s63, s7, 4")
    A("s_lshr_b32 s63, s63, 3")
    A("s_sub_u32 s63, s7, s63")
    A("s_lshl_b32 s63, s63, 8")
    A("s_add_u32 s63, s63, s6")
    A("s_and_b32 s7, s7, 7")
    A("s_cmp_lg_u32 s7, 3")
    A("s_cselect_b32 s61, 7340032, 0")
    def tail_setup():
        A("v_and_b32 v2, 15, v0")
        A("v_lshlrev_b32 v9, 4, v2")
        A("v_lshl_add_u32 v9, v1, 14, v9")
        A("v_and_b32 v10, 1, v1")
        A("v_lshl_add_u32 v10, v2, 1, v10")
        A("v_lshlrev_b32 v10, 5, v10")
        A("v_lshrrev_b32 v11, 5, v0")
        A("v_lshl_add_u32 v10, v11, 4, v10")
        A("v_bfe_u32 v11, v0, 3, 1")
        A("v_lshlrev_b32 v11, 7, v11")
        A("v_lshl_add_u32 v11, v1, 5, v11")
        A("v_and_b32 v2, 1, v0")
        A("v_lshlrev_b32 v2, 4, v2")
        A("v_mov_b32 v1, 0xffff")
        A("v_lshlrev_b32 v1, v2, v1")
        A("v_bfe_u32 v2, v0, 1, 2")
        for r in range(4):
            A(f"v_cmp_eq_u32 vcc, {r}, v2")
            A(f"v_cndmask_b32 v{12+r}, 0, v1, vcc")
    if W0 == 9: tail_setup()
    sr = 8
    for ri, name in enumerate(regs[1:]):
        if name == "w1":
            A(f"s_mov_b64 s[{sr}:{sr+1}], s[28:29]"); A(f"s_mov_b32 s{sr+2}, s61")
            strided(8, 3, sr, 63, 4*7168, f"s_add_u32 m0, s59, {W1B}")
        elif name in ("k", "v"):
            ptr, rb = (18, KB) if name == "k" else (20, VB)
            A(f"s_mov_b64 s[{sr}:{sr+1}], s[{ptr}:{ptr+1}]"); A(f"s_mov_b32 s{sr+2}, 67108864")
            for i in range(8):
                pre_issue()
                if i == 0:
                    A("s_and_b32 s7, s4, 1"); A("s_lshl_b32 s7, s7, 12")
                    A("s_add_u32 s6, s62, s7"); A("s_add_u32 s7, s7, s59"); A(f"s_add_u32 m0, s7, {rb}")
                if i == 4:
                    A("s_xor_b32 s6, s6, 4096"); A("s_xor_b32 s7, s7, 4096"); A(f"s_add_u32 m0, s7, {rb}")
                A(f"buffer_load_dwordx4 v{5+(i&1)}, s[{sr}:{sr+3}], s6 offen offset:{(i&3)*1024} {nt} lds")
        elif name == "w2":
            A(f"s_mov_b64 s[{sr}:{sr+1}], s[32:33]"); A(f"s_mov_b32 s{sr+2}, 7340032")
            if not cut: wait_ge(FL_A, 1, [f"ds_read_b32 v114, v127 offset:{TAGW}"])
            A("s_lshr_b32 s6, s4, 3")
            A("s_lshl2_add_u32 s6, s6, s5")
            A(f"s_mul_i32 s6, s6, {28*2048}")
            A("s_and_b32 s7, s4, 7")
            A("s_lshl_b32 s7, s7, 8")
            A("s_add_u32 s60, s6, s7")
            A("s_mul_i32 s7, s5, 7168")
            strided(7, 7, sr, 60, 8192, f"s_add_u32 m0, s7, {R0}")
            A("s_waitcnt lgkmcnt(0)")
            tag_from(114)
        elif name == "wo":
            A(f"s_mov_b64 s[{sr}:{sr+1}], s[24:25]"); A(f"s_mov_b32 s{sr+2}, 8388608")
            A("s_lshr_b32 s60, s4, 1")
            A("s_and_b32 s7, s4, 1")
            A("s_lshl2_add_u32 s61, s7, s5")
            A("s_lshl_b32 s6, s60, 8")
            A("s_add_u32 s6, s6, s61")
            A("s_lshl_b32 s6, s6, 8")
            A("s_and_b32 s7, s60, 7"); A("s_lshl_b32 s7, s7, 11"); A("s_add_u32 s6, s6, s7")
            for t in range(8):
                pre_issue()
                A(f"buffer_load_dwordx4 v[{16+4*t}:{19+4*t}], v9, s[{sr}:{sr+3}], s6 offen {nt}")
                if t < 7: A(f"s_xor_b32 s6, s6, {(t ^ (t+1)) << 11}")
        stamp(2 + ri)
        if ri == 0 and W0 != 9: tail_setup()
        sr = 48 - sr
    for t in [t for t in ticks if t not in ticked]:
        A(f"s_waitcnt vmcnt({NLOAD-t})"); set_flag(t)
    A(f"s_mul_i32 s6, s60, {PSTR}")
    A("s_lshl_b32 s61, s61, 10")
    A("s_add_u32 s6, s6, s61")
    A(f"s_add_u32 s6, s6, {SP}")
    oreads = [f"ds_read_b128 v[48:51], v11 offset:{OA}", f"ds_read_b128 v[52:55], v11 offset:{OA+16}"]
    if not cut: wait_ge(FL_A, 4, oreads)
    stamp(7)
    A("s_waitcnt lgkmcnt(0)")
    def ands(t):
        for r in range(4): A(f"v_and_b32 v{56+4*t+r}, v{48+t}, v{12+r}")
    ands(0); ands(1)
    for t in range(8):
        A(f"s_waitcnt vmcnt({7-t})")
        c = "0" if t == 0 else "v[4:7]"
        A(f"v_mfma_f32_16x16x32_bf16 v[4:7], v[{56+4*t}:{59+4*t}], v[{16+4*t}:{19+4*t}], {c}")
        if t + 2 < 8: ands(t + 2)
    stamp(8)
    tag4(4, 4)
    A("buffer_store_dwordx4 v[4:7], v10, s[12:15], s6 offen sc1")
    if probe is not None and prole == 'L': pwrite()
    set_flag(64)
    stamp(9)
    A("s_branch L_fin")

    A("L_A:")
    if codepf:
        A("s_cmp_eq_u32 s5, 2")
        A("s_cbranch_scc0 L_nopf")
        A("s_getpc_b64 s[6:7]")
        A("L_pc:")
        A(f"s_sub_u32 s6, s6, L_pc-{KN}_kernel")
        A("s_subb_u32 s7, s7, 0")
        A("s_and_b32 s59, s4, 31")
        A("v_lshl_add_u32 v1, v0, 5, s59")
        A(f"v_cmp_gt_u32 vcc, ((L_end-{KN}_kernel)>>7)+1, v1")
        A("v_lshlrev_b32 v1, 7, v1")
        A("s_mov_b64 exec, vcc")
        A("v_mov_b32 v3, s7")
        A("v_add_co_u32 v2, vcc, s6, v1")
        A("v_addc_co_u32 v3, vcc, 0, v3, vcc")
        A("global_load_dword v113, v[2:3], off")
        A("s_mov_b64 exec, -1")
        A("L_nopf:")
    A("s_lshr_b32 s61, s4, 6")
    A("s_bfe_u32 s60, s4, 0x10005")
    A("s_bfe_u32 s62, s4, 0x20004")
    A("s_lshl3_add_u32 s6, s61, s62")
    A("s_lshl_b32 s6, s6, 12")
    A("s_and_b32 s7, s4, 15")
    A("s_lshl2_add_u32 s7, s7, s5")
    A("s_lshl_b32 s7, s7, 6")
    A("s_add_u32 s6, s6, s7")
    A(f"s_add_u32 s63, s6, {QP}")
    A("s_waitcnt lgkmcnt(0)")
    gemv64(XN, R0, 62, 1, land["wq"], 1)
    set_flag(1)
    A("s_mov_b32 exec_lo, 0x30003")
    A("s_mov_b32 exec_hi, 0x30003")
    A("v_pk_add_f32 v[8:9], v[8:9], v[12:13]")
    A("v_pk_add_f32 v[10:11], v[10:11], v[14:15]")
    tag4(8, 8)
    A("buffer_store_dwordx4 v[8:11], v5, s[12:15], s63 offen sc1")
    A("s_mov_b64 exec, -1")
    stamp(3)
    A("s_lshr_b32 s6, s4, 5")
    A("s_lshl4_add_u32 s6, s6, s5")
    A("s_lshl_b32 s97, s6, 10")
    A("s_bfe_u32 s6, s4, 0x10004")
    A("s_lshl_b32 s6, s6, 6")
    A("s_and_b32 s7, s4, 15")
    A("s_add_u32 s6, s6, s7")
    A("s_lshl_b32 s6, s6, 6")
    A("s_add_u32 s59, s97, s6")
    A("s_xor_b32 s6, s60, 1")
    A("s_lshl_b32 s6, s6, 13")
    if nsq == 1: A("s_add_u32 s59, s59, s6")
    qs = [QP] if nsq == 1 else [QP, QP + 8192]
    traddr(14, VB)
    A("v_lshlrev_b32 v1, 4, v0")
    A(f"s_add_u32 s6, s97, {QP}")
    A("v_add_u32 v2, s6, v1")
    A("v_lshrrev_b32 v3, 5, v0")
    A("s_lshl_b32 s6, s5, 1")
    A("v_add_u32 v3, s6, v3")
    A(f"v_mul_u32_u24 v3, {QSTR}, v3")
    A("v_and_b32 v4, 31, v0")
    A("v_lshl_add_u32 v3, v4, 3, v3")
    A("v_and_b32 v4, 7, v0")
    A("v_lshrrev_b32 v5, 4, v0")
    A(f"v_mul_u32_u24 v6, {QSTR}, v4")
    A("v_lshl_add_u32 v6, v5, 4, v6")
    A("v_lshlrev_b32 v7, 1, v4")
    A("v_xor_b32 v7, v7, v5")
    A("v_lshlrev_b32 v7, 4, v7")
    A("v_and_b32 v8, 15, v0")
    A("v_lshl_add_u32 v7, v8, 8, v7")
    A("s_lshl_b32 s6, s5, 13")
    A(f"s_add_u32 s6, s6, {KB}")
    A("v_add_u32 v8, s6, v7")
    A("v_xor_b32 v9, 64, v8")
    A("v_xor_b32 v10, 0x80, v8")
    A("v_xor_b32 v11, 0xc0, v8")
    A("v_lshlrev_b32 v12, 15, v4")
    A("v_and_b32 v13, 8, v0")
    A("v_lshl_add_u32 v12, v13, 3, v12")
    A("v_lshl_add_u32 v12, v5, 4, v12")
    A("v_cmp_eq_u32 s[98:99], 8, v13")
    A("v_lshlrev_b32 v13, 3, v5")
    A("s_lshl_b32 s7, s5, 10")
    A("v_add_u32 v116, s7, v1")
    A("s_lshl_b32 s7, s5, 2")
    A("v_add_u32 v117, s7, v1")
    A("s_and_b32 s7, s4, 63")
    A("s_lshl_b32 s6, s61, 5")
    A("s_add_u32 s6, s6, s5")
    A("s_lshl_b32 s6, s6, 6")
    A("s_add_u32 s6, s6, s7")
    A("s_lshl_b32 s6, s6, 7")
    A(f"s_add_u32 s63, s6, {OP}")
    def qloads(f):
        for rs in range(4):
            A(f"s_mov_b32 s6, {rs*4096}")
            A(f"buffer_load_dwordx4 v[{16+4*rs}:{19+4*rs}], v2, s[12:15], s6 offen {f}")
    def kreads():
        wait_ge(FL_L, land["k"])
        for T in range(2):
            for t in range(4): A(f"ds_read_b128 v[{48+16*T+4*t}:{51+16*T+4*t}], v{8+t} offset:{T*4096}")
    A(f"s_mov_b32 s57, {f32(math.log2(math.e) / math.sqrt(128.0))}")
    for k in range(4): A(f"v_mov_b32 v{44+k}, 0x3f803f80")
    if sq: sentinel(59, qs)
    if tq: wait_ge(FL_L, tq)
    stamp(4)
    gsum(qloads, [16, 20, 24, 28], 112, kreads if order != "Y" else None, None)
    stamp(5)
    A("v_cvt_pk_bf16_f32 v16, v16, v17")
    A("v_cvt_pk_bf16_f32 v17, v18, v19")
    A(f"ds_write_b64 v3, v[16:17] offset:{QL}")
    set_flag(2)
    if order == "Y": kreads()
    wait_ge(FL_A, 2, [f"ds_read_b128 v[{16+4*t}:{19+4*t}], v6 offset:{QL+t*64}" for t in range(4)])
    for t in range(4):
        A(f"s_waitcnt lgkmcnt({3-t})")
        for T in range(2):
            c = "0" if t == 0 else f"v[{32+4*T}:{35+4*T}]"
            A(f"v_mfma_f32_16x16x32_bf16 v[{32+4*T}:{35+4*T}], v[{48+16*T+4*t}:{51+16*T+4*t}], v[{16+4*t}:{19+4*t}], {c}")
    A("v_max3_f32 v40, v32, v33, v34")
    A("v_max3_f32 v41, v35, v36, v37")
    A("v_max3_f32 v40, v40, v38, v39")
    A("v_max_f32 v40, v40, v41")
    allred(40, 41, "v_max_f32", ())
    A("v_mul_f32 v40, s57, v40")
    A(f"ds_write_b32 v117, v40 offset:{MX}")
    for k in range(8): A(f"v_fma_f32 v{32+k}, v{32+k}, s57, -v40")
    for k in range(8): A(f"v_exp_f32 v{32+k}, v{32+k}")
    for k in range(4): A(f"v_cvt_pk_bf16_f32 v{32+k}, v{32+2*k}, v{33+2*k}")
    A(f"ds_write_b128 v116, v[32:35] offset:{PX}")
    set_flag(3)
    wait_ge(FL_A, 3, [f"ds_read_b128 v[40:43], v1 offset:{MX}"] + [f"ds_read_b128 v[{16+4*w}:{19+4*w}], v1 offset:{PX+w*1024}" for w in range(4)])
    stamp(6)
    A("s_waitcnt lgkmcnt(0)")
    for w in range(4): A(f"v_mfma_f32_16x16x32_bf16 v[{80+4*w}:{83+4*w}], v[44:47], v[{16+4*w}:{19+4*w}], 0")
    A("v_max3_f32 v36, v40, v41, v42")
    A("v_max_f32 v36, v36, v43")
    for w in range(4): A(f"v_sub_f32 v{40+w}, v{40+w}, v36")
    for w in range(4): A(f"v_exp_f32 v{40+w}, v{40+w}")
    A("v_mul_f32 v37, v40, v80")
    for w in range(1, 4): A(f"v_fmac_f32 v37, v{40+w}, v{80+4*w}")
    A("v_rcp_f32 v38, v37")
    A("v_log_f32 v37, v37")
    wait_ge(FL_L, land["v"])
    stamp(7)
    for kb in range(4):
        for dt in range(2):
            for hh in range(2):
                r = 48 + 8*kb + 4*dt + 2*hh
                A(f"ds_read_b64_tr_b16 v[{r}:{r+1}], v{14+dt} offset:{kb*8192+hh*4096}")
    A("v_add_f32 v36, v36, v37")
    for w in range(4): A(f"v_mul_f32 v{40+w}, v{40+w}, v38")
    A("v_bfe_u32 v36, v36, v13, 8")
    for kb in range(4):
        for dt in range(2):
            A(f"s_waitcnt lgkmcnt({14-4*kb-2*dt})")
            r = 48 + 8*kb + 4*dt; d = 80 + 8*kb + 4*dt
            A(f"v_mfma_f32_16x16x32_bf16 v[{d}:{d+3}], v[{r}:{r+3}], v[{16+4*kb}:{19+4*kb}], 0")
    for kb in range(4):
        for k in range(4): A(f"v_cndmask_b32 v{80+8*kb+k}, v{80+8*kb+k}, v{84+8*kb+k}, s[98:99]")
        for k in range(4):
            if kb == 0: A(f"v_mul_f32 v{32+k}, v40, v{80+k}")
            else: A(f"v_fmac_f32 v{32+k}, v{40+kb}, v{80+8*kb+k}")
    tag4(32, 32, 3)
    A("v_and_or_b32 v35, v35, v124, v36")
    A("buffer_store_dwordx4 v[32:35], v12, s[12:15], s63 offen sc1")
    stamp(8)
    A("s_cmp_ge_u32 s5, 2")
    A("s_cbranch_scc1 L_final")
    gw[0] = 100
    if dummy is not None:
        A("s_lshl1_add_u32 s6, s4, s5"); A("s_lshl_b32 s6, s6, 10"); A("s_add_u32 s6, s6, 0x370000")
        A(f"buffer_store_dwordx4 v[32:35], v1, s[12:15], s6 offen {dummy}")
    A("s_and_b32 s6, s4, 0xfe")
    A("s_add_u32 s6, s6, s5")
    A("s_lshl_b32 s6, s6, 12")
    A(f"s_add_u32 s96, s6, {OP}")
    A("s_and_b32 s6, s4, 1")
    A("s_lshl_b32 s6, s6, 9")
    A("s_add_u32 s97, s96, s6")
    A("v_lshl_add_u32 v3, v4, 2, v5")
    A("s_bfe_u32 s6, s4, 0x30001")
    A("v_xor_b32 v3, s6, v3")
    A("v_lshlrev_b32 v3, 2, v3")
    A("s_lshl_b32 s6, s5, 7")
    A("v_add_u32 v3, s6, v3")
    A("v_and_b32 v2, 3, v0")
    A("v_lshlrev_b32 v2, 3, v2")
    A("v_mov_b32 v6, 12")
    A("v_lshlrev_b32 v2, v2, v6")
    A("v_xor_b32 v2, 0x0c0c0c0c, v2")
    if so: sentinel(97, [0, 1024, 2048, 3072][:nso] if nso != 2 else [0, 2048])
    if to: wait_ge(FL_L, to)
    stamp(9)
    l = gather(lambda f: [A(f"buffer_load_dwordx4 v[{16+4*i}:{19+4*i}], v1, s[12:15], s96 offen offset:{i*1024} {f}") for i in range(4)])
    for i in range(4): A(f"v_perm_b32 v{40+i}, v{19+4*i}, v{19+4*i}, v2")
    untag([16, 20, 24, 28], 32, 3)
    poll_tail(l, 32)
    stamp(10)
    for i in range(4): A(f"v_or_b32_dpp v{40+i}, v{40+i}, v{40+i} quad_perm:[1,0,3,2] row_mask:0xf bank_mask:0xf")
    for i in range(4): A(f"v_or_b32_dpp v{40+i}, v{40+i}, v{40+i} quad_perm:[2,3,0,1] row_mask:0xf bank_mask:0xf")
    A("v_max3_f32 v36, v40, v41, v42")
    A("v_max_f32 v36, v36, v43")
    for i in range(4): A(f"v_and_b32 v{19+4*i}, v124, v{19+4*i}")
    allred(36, 37, "v_max_f32", (8,))
    for i in range(4): A(f"v_sub_f32 v{40+i}, v{40+i}, v36")
    for i in range(4): A(f"v_exp_f32 v{40+i}, v{40+i}")
    for k in range(4): A(f"v_mul_f32 v{16+k}, v40, v{16+k}")
    A("v_add_f32 v36, v40, v41")
    A("v_add_f32 v37, v42, v43")
    for k in range(4): A(f"v_fmac_f32 v{16+k}, v41, v{20+k}")
    A("v_add_f32 v36, v36, v37")
    for k in range(4): A(f"v_fmac_f32 v{16+k}, v42, v{24+k}")
    A("v_mov_b32 v37, v36")
    for k in range(4): A(f"v_fmac_f32 v{16+k}, v43, v{28+k}")
    A("v_permlane32_swap_b32 v36, v37")
    A("v_permlane32_swap_b32 v16, v18")
    A("v_permlane32_swap_b32 v17, v19")
    A("v_add_f32 v36, v36, v37")
    A("v_add_f32 v16, v16, v18")
    A("v_add_f32 v17, v17, v19")
    A("v_mov_b32 v37, v36")
    A("v_permlane16_swap_b32 v16, v17")
    A("v_permlane16_swap_b32 v36, v37")
    A("v_add_f32 v16, v16, v17")
    A("v_add_f32 v36, v36, v37")
    A("v_add_f32_dpp v16, v16, v16 row_ror:8 row_mask:0xf bank_mask:0xf")
    A("v_add_f32_dpp v36, v36, v36 row_ror:8 row_mask:0xf bank_mask:0xf")
    A("v_rcp_f32 v36, v36")
    A("v_mul_f32 v16, v16, v36")
    A("v_cvt_pk_bf16_f32 v16, v16, v16")
    A(f"ds_write_b32 v3, v16 offset:{OA}")
    set_flag(4)
    stamp(11)
    A("s_branch L_fin")
    A("L_final:")
    set_flag(4)
    A("v_and_b32 v3, 1, v0")
    A("v_lshrrev_b32 v2, 1, v0")
    A(f"v_mul_u32_u24 v2, {PSTR}, v2")
    A("v_lshl_add_u32 v2, v3, 4, v2")
    A("s_lshl_b32 s59, s4, 5")
    A("v_add_u32 v2, s59, v2")
    A("v_lshlrev_b32 v7, 2, v0")
    A("s_lshl_b32 s6, s4, 3")
    A("s_cmp_eq_u32 s5, 3")
    A("s_cbranch_scc1 L_fins")
    A("s_load_dwordx2 s[48:49], s[34:35], s6")
    A("s_and_b32 s7, s4, 3")
    A(f"s_mul_i32 s7, s7, {PSTR}")
    A("s_add_u32 s7, s7, s59")
    A(f"s_add_u32 s59, s7, {ZP}")
    A(f"s_mov_b32 s96, {ZP}")
    A("v_lshlrev_b32 v6, 4, v5")
    A("s_waitcnt lgkmcnt(0)")
    A("v_lshrrev_b64 v[8:9], v6, s[48:49]")
    A("v_lshlrev_b32 v119, 16, v8")
    wait_ge(FL_M, 4)
    stamp(9)
    if sz: sentinel(59, [x*4*PSTR for x in range(8)])
    stamp(10)
    gsum(lambda f: A(f"buffer_load_dwordx4 v[16:19], v2, s[12:15], s96 offen {f}"), [16], 32)
    tred4(16, (8, 4, 2))
    rne(16, 16)
    A("v_add_f32 v16, v16, v119")
    rne(16, 16)
    A(f"v_mul_f32 v17, {f32(-math.log2(math.e))}, v16")
    A("v_exp_f32 v17, v17")
    A("v_add_f32 v17, 1.0, v17")
    A("v_rcp_f32 v17, v17")
    A("v_mul_f32 v40, v16, v17")
    rne(40, 40)
    A(f"ds_write_b32 v7, v40 offset:{GX}")
    set_flag(5)
    stamp(11)
    A("s_branch L_fin")
    A("L_fins:")
    mksrd(44, 36, 4096)
    A("v_lshlrev_b32 v6, 11, v3")
    A("v_lshl_add_u32 v6, v5, 1, v6")
    A("v_add_u32 v6, s6, v6")
    A(f"ds_read_u16 v118, v6 offset:{XR}")
    A("buffer_load_ushort v115, v6, s[44:47], 0 offen")
    A(f"s_add_u32 s97, s59, {SP + ss*PSTR}")
    A(f"s_mov_b32 s60, {SP}"); A(f"s_mov_b32 s61, {SP+32*PSTR}"); A(f"s_mov_b32 s62, {SP+64*PSTR}"); A(f"s_mov_b32 s63, {SP+96*PSTR}")
    wait_ge(FL_L, 64)
    A("v_lshlrev_b32 v118, 16, v118")
    if ss: sentinel(97, [x*16*PSTR for x in range(8)])
    stamp(9)
    gsum(lambda f: [A(f"buffer_load_dwordx4 v[{16+4*i}:{19+4*i}], v2, s[12:15], s{60+i} offen {f}") for i in range(4)], [16, 20, 24, 28], 32)
    stamp(10)
    lg = lab("gw")
    A(f"ds_read_b32 v41, v127 offset:{FL_A+8}")
    A(f"ds_read_b32 v40, v7 offset:{GX}")
    tred4(16, (8, 4, 2))
    rne(16, 16)
    A(f"s_branch {lg}b")
    A(f"{lg}:")
    A(f"ds_read_b32 v41, v127 offset:{FL_A+8}")
    A(f"ds_read_b32 v40, v7 offset:{GX}")
    A("s_sub_u32 s58, s58, 1")
    A("s_cbranch_scc1 L_bail")
    A(f"{lg}b:")
    A("s_waitcnt lgkmcnt(0)")
    A("v_cmp_gt_u32 vcc, 5, v41")
    A(f"s_cbranch_vccnz {lg}")
    A("v_mul_f32 v16, v16, v40")
    rne(16, 16)
    A("v_add_f32 v16, v16, v118")
    A("v_cvt_pk_bf16_f32 v16, v16, v16")
    A("s_mov_b32 exec_lo, 0x30003")
    A("s_mov_b32 exec_hi, 0x30003")
    A(f"buffer_store_short v16, v6, s[44:47], 0 offen {outflag}")
    stamp(11)
    if probe is not None:
        A("s_waitcnt lgkmcnt(0)")
        if prole == 'A':
            A(f"s_sub_u32 s6, s{64+2*probe}, s64")
        else:
            A("ds_read_b32 v20, v127 offset:52")
            A("s_waitcnt lgkmcnt(0)")
            A("v_readfirstlane_b32 s6, v20")
        A("s_min_u32 s6, s6, 3000")
        A(f"s_mul_i32 s6, s6, {pmul}")
        if pwg is not None:
            A(f"s_cmp_eq_u32 s4, {pwg}")
            A("s_cselect_b32 s6, s6, 0")
        A("L_probe:")
        A("s_memrealtime s[96:97]")
        A("s_waitcnt lgkmcnt(0)")
        A("s_sub_u32 s7, s96, s86")
        A("s_cmp_lt_u32 s7, s6")
        A("s_cbranch_scc1 L_probe")
    A("s_cmp_eq_u32 s4, 0")
    A("s_cbranch_scc0 L_fin")
    A("s_mov_b64 exec, 1")
    A("v_mov_b32 v17, s56")
    A("buffer_store_dword v17, v127, s[12:15], 0 offen sc1")
    A("L_fin:")
    if stamps and probe is None:
        A("s_barrier")
        A("s_mov_b64 exec, 1")
        A("s_waitcnt vmcnt(0) lgkmcnt(0)")
        A("s_mul_i32 s6, s2, 12")
        A("s_add_u32 s6, s6, s3")
        A(f"s_mul_i32 s6, s6, {(NST+1)*8}")
        A("s_add_u32 s88, s64, s100"); A("s_addc_u32 s89, s65, 0")
        A(f"s_add_u32 s6, s6, {128<<20}")
        for i in range(NST + 1):
            A(f"v_mov_b32 v4, s{64+2*i}"); A(f"v_mov_b32 v5, s{65+2*i}")
            A(f"buffer_store_dwordx2 v[4:5], v127, s[12:15], s6 offen offset:{8*i}")
            A("s_nop 1")
    A("L_bail:")
    A("L_end:")
    A("s_endpgm")
    A('.section .rodata,"a"'); A(".p2align 6")
    A(f".amdhsa_kernel {KN}_kernel")
    for d in ("next_free_vgpr 128", "next_free_sgpr 102", "accum_offset 128", "group_segment_fixed_size 0", "kernarg_size 104",
              "user_sgpr_count 2", "user_sgpr_kernarg_segment_ptr 1", "system_sgpr_workgroup_id_x 1"):
        L.append("  .amdhsa_" + d)
    A(".end_amdhsa_kernel")
    lines = []
    for x in L: lines.extend(x.split("\n"))
    if stamps:
        i = next(i for i, x in enumerate(lines) if "s_load_dwordx2 s[12:13]" in x)
        lines[i+1:i+1] = [f"    s_mov_b64 s[{64+2*k}:{65+2*k}], 0" for k in range(1, NST)] + ["    s_mov_b32 s100, 0"]
    return "\n".join(pad(lines)) + "\n"

if __name__ == "__main__":
    import ast
    out = sys.argv[1]
    kw = {}
    for a in sys.argv[2:]:
        k, v = a.split("=")
        try: v = ast.literal_eval(v)
        except Exception: pass
        kw[k] = v
    open(out, "w").write(gen(**kw))
```
